```python
import torch

def _softmax(x, axis=-1):
    return torch.softmax(x, dim=axis)
def _gelu(x):
    return torch.nn.functional.gelu(x, approximate="tanh")
def _silu(x):
    return torch.nn.functional.silu(x)
def _sigmoid(x):
    return torch.sigmoid(x)
def _layernorm(x, axis=-1, eps=1e-5):
    m = x.mean(dim=axis, keepdim=True)
    v = x.var(dim=axis, keepdim=True, unbiased=False)
    return (x - m) / torch.sqrt(v + eps)
def _scatter_add(tgt, idx, src, axis=0):
    return tgt.clone().index_add_(axis, idx, src)
def _segment_sum(src, seg, n):
    out = torch.zeros((n,) + src.shape[1:], dtype=src.dtype)
    return out.index_add_(0, seg, src)
def _pad(x, pw):
    flat = tuple(v for pair in reversed(pw) for v in pair)
    return torch.nn.functional.pad(x, flat)

kernel_name = 'recurrent_scan__gqa_block_cached__glu_gated_reglu__decode'

def setup_inputs():

    _w = (lambda a: (lambda t: t.to(torch.bfloat16) if t.is_floating_point() else t)(torch.as_tensor(a)))
    def _A_setup():
        B, Sq, D = 8, 1, 512
        Hq, Hkv, Sk, Dh = 32, 8, 8192, 128
        assert Hq % Hkv == 0, (Hq, Hkv)
        return {
            "x": _w((lambda *s: torch.randn(*s, dtype=torch.bfloat16) * 0.2)(B, Sq, D)),
            "k_cache": _w((lambda *s: torch.randn(*s, dtype=torch.bfloat16) * 1.6)(B, Hkv, Sk, Dh)),
            "v_cache": _w((lambda *s: torch.randn(*s, dtype=torch.bfloat16) * 1.6)(B, Hkv, Sk, Dh)),
            "wq": _w((lambda *s: torch.randn(*s, dtype=torch.bfloat16) * 1.6)(D, Hq * Dh) * (D ** -0.5)),
            "wo": _w((lambda *s: torch.randn(*s, dtype=torch.bfloat16) * 1.6)(Hq * Dh, D) * ((Hq * Dh) ** -0.5)),
        }
    _A_in = _A_setup()

    def _B_setup():
        B, S, D, F = 8, 1, 512, 1792
        return {
            "x": _w((lambda *s: torch.randn(*s, dtype=torch.bfloat16) * 0.2)(B, S, D)),
            "W_gate": _w((lambda *s: torch.randn(*s, dtype=torch.bfloat16) * 0.8)(D, F) * (2.0 / D) ** 0.5),
            "W_up": _w((lambda *s: torch.randn(*s, dtype=torch.bfloat16) * 0.8)(D, F) * (2.0 / D) ** 0.5),
            "W_down": _w((lambda *s: torch.randn(*s, dtype=torch.bfloat16) * 0.8)(F, D) * (1.0 / F) ** 0.5),
        }
    _B_in = _B_setup()

    return {
        "A_x": _A_in["x"],
        "A_k_cache": _A_in["k_cache"],
        "A_v_cache": _A_in["v_cache"],
        "A_wq": _A_in["wq"],
        "A_wo": _A_in["wo"],
        "B_x": _B_in["x"],
        "B_W_gate": _B_in["W_gate"],
        "B_W_up": _B_in["W_up"],
        "B_W_down": _B_in["W_down"],
    }

def reference(A_x, A_k_cache, A_v_cache, A_wq, A_wo, B_x, B_W_gate, B_W_up, B_W_down):
    def _A_ref(x, k_cache, v_cache, wq, wo):
        B, Sq, D = x.shape
        Hq, Dh = 32, 128
        Hkv = k_cache.shape[1]
        rep = Hq // Hkv
        q = (lambda x, *d: x.permute(*d))((x @ wq).reshape(B, Sq, Hq, Dh), 0, 2, 1, 3)
        k = (lambda x, n, axis: torch.repeat_interleave(x, n, dim=axis))(k_cache, rep, axis=1)
        v = (lambda x, n, axis: torch.repeat_interleave(x, n, dim=axis))(v_cache, rep, axis=1)
        scores = torch.einsum("bhqd,bhkd->bhqk", q, k) * (Dh ** -0.5)
        p = _softmax(scores, axis=-1)
        o = torch.einsum("bhqk,bhkd->bhqd", p, v)
        return (lambda x, *d: x.permute(*d))(o, 0, 2, 1, 3).reshape(B, Sq, Hq * Dh) @ wo

    def _B_ref(x, W_gate, W_up, W_down):
        gate = torch.einsum("bsd,df->bsf", x, W_gate)
        up = torch.einsum("bsd,df->bsf", x, W_up)
        gate = gate * (lambda x, dt: x.to(dt))(gate > 0, gate.dtype)
        h = gate * up
        return torch.einsum("bsf,fd->bsd", h, W_down)

    x = A_x
    xn = _layernorm(x, axis=-1)
    s = _A_ref(xn, A_k_cache, A_v_cache, A_wq, A_wo)
    g = _silu(_B_ref(xn, B_W_gate, B_W_up, B_W_down))
    return x + s * g
```

```python
import sys

NAME = "recurrent_scan__gqa_block_cached__glu_gated_reglu__decode"
out = []
def E(s=""):
    out.append(s)

YP = 0x0
OP = 0x100000
ML = 0x180000
P3 = 0x200000
WS_SIZE = 0x20000000
LOG2E = 0x3FB8AA3B
SCALE = 0x3DB504F3

def srd(d, ptr, size):
    E(f"  s_mov_b32 s{d}, s{ptr}")
    E(f"  s_mov_b32 s{d+1}, s{ptr+1}")
    E(f"  s_mov_b32 s{d+2}, 0x{size:x}")
    E(f"  s_mov_b32 s{d+3}, 0x00020000")

def kernel_begin(name):
    E(f".globl {name}")
    E(".p2align 8")
    E(f".type {name},@function")
    E(f"{name}:")

def transpose(S, T, slo, shi):
    for q in range(4):
        for e in range(2):
            c = 2*q+e
            for p in range(4):
                sel = slo if e == 0 else shi
                E(f"  v_perm_b32 v{T+4*c+p}, v{S+4*(2*p+1)+q}, v{S+4*(2*p)+q}, s{sel}")

def bperm_xor(dst, src, addr_tmp, lane4, x):
    E(f"  v_xor_b32 v{addr_tmp}, {x*4}, v{lane4}")
    E(f"  ds_bpermute_b32 v{dst}, v{addr_tmp}, v{src}")
    E("  s_waitcnt lgkmcnt(0)")

def gen_k1():
    kernel_begin("proj_kernel")
    E("  s_cmp_ge_u32 s2, 240")
    E("  s_cbranch_scc1 L_k1_end")
    E("  s_load_dwordx2 s[4:5], s[0:1], 0")
    E("  s_load_dwordx2 s[6:7], s[0:1], 24")
    E("  s_load_dwordx4 s[8:11], s[0:1], 48")
    E("  s_load_dwordx2 s[12:13], s[0:1], 88")
    E("  v_and_b32 v1, 63, v0")
    E("  v_lshrrev_b32 v2, 6, v0")
    E("  v_and_b32 v3, 15, v1")
    E("  v_lshrrev_b32 v4, 4, v1")
    E("  v_readfirstlane_b32 s14, v2")
    E("  s_lshr_b32 s15, s2, 2")
    E("  s_and_b32 s16, s2, 3")
    E("  s_mov_b32 s40, 0x05040100")
    E("  s_mov_b32 s41, 0x07060302")
    E("  s_waitcnt lgkmcnt(0)")
    srd(20, 4, 8192)
    srd(28, 12, WS_SIZE)
    E("  s_cmp_lt_u32 s15, 32")
    E("  s_cbranch_scc1 L_k1_q")
    E("  s_cmp_lt_u32 s15, 46")
    E("  s_cbranch_scc1 L_k1_g")
    srd(24, 10, 512*3584)
    E("  s_mov_b32 s17, 3584")
    E("  s_sub_u32 s18, s15, 46")
    E("  s_branch L_k1_sel")
    E("L_k1_g:")
    srd(24, 8, 512*3584)
    E("  s_mov_b32 s17, 3584")
    E("  s_sub_u32 s18, s15, 32")
    E("  s_branch L_k1_sel")
    E("L_k1_q:")
    srd(24, 6, 512*8192)
    E("  s_mov_b32 s17, 8192")
    E("  s_mov_b32 s18, s15")
    E("L_k1_sel:")
    E("  s_lshl_b32 s18, s18, 8")
    E("  s_lshl_b32 s19, s16, 2")
    E("  s_add_u32 s19, s19, s14")
    E("  s_lshl_b32 s19, s19, 5")
    E("  v_and_b32 v5, 7, v1")
    E("  v_lshrrev_b32 v6, 3, v1")
    E("  v_lshlrev_b32 v5, 10, v5")
    E("  v_lshl_add_u32 v5, v6, 7, v5")
    for i in range(8):
        E(f"  buffer_load_dwordx4 v[{96+4*i}:{96+4*i+3}], v5, s[20:23], 0 offen offset:{16*i}")
    E("  v_and_b32 v6, 7, v3")
    E("  v_lshlrev_b32 v6, 10, v6")
    E("  v_lshl_add_u32 v6, v4, 4, v6")
    E("  s_lshl_b32 s32, s19, 1")
    E("  buffer_load_dwordx4 v[128:131], v6, s[20:23], s32 offen")
    E("  s_lshl_b32 s33, s17, 3")
    E("  v_mul_lo_u32 v7, v4, s33")
    E("  v_lshl_add_u32 v7, v3, 4, v7")
    E("  s_mul_i32 s34, s19, s17")
    E("  s_add_u32 s34, s34, s18")
    for i in range(8):
        E(f"  buffer_load_dwordx4 v[{64+4*i}:{64+4*i+3}], v7, s[24:27], s34 offen")
        if i < 7:
            E("  s_add_u32 s34, s34, s17")
    E("  v_lshlrev_b32 v8, 2, v1")
    E("  s_waitcnt vmcnt(9)")
    for i in range(32):
        E(f"  v_lshlrev_b32 v{132+2*i}, 16, v{96+i}")
        E(f"  v_and_b32 v{133+2*i}, 0xffff0000, v{96+i}")
    for k in range(4):
        E(f"  v_add_f32 v{10+k}, v{132+k}, v{136+k}")
    for i in range(8, 64, 4):
        for k in range(4):
            E(f"  v_add_f32 v{10+k}, v{10+k}, v{132+i+k}")
    E("  v_add_f32 v10, v10, v11")
    E("  v_add_f32 v12, v12, v13")
    E("  v_add_f32 v10, v10, v12")
    for x in (8, 16, 32):
        bperm_xor(11, 10, 9, 8, x)
        E("  v_add_f32 v10, v10, v11")
    E("  v_mul_f32 v10, 0x3b000000, v10")
    for k in range(4):
        E(f"  v_mov_b32 v{12+k}, 0")
    for i in range(0, 64, 4):
        for k in range(4):
            E(f"  v_sub_f32 v{16+k}, v{132+i+k}, v10")
        for k in range(4):
            E(f"  v_fmac_f32 v{12+k}, v{16+k}, v{16+k}")
    E("  v_add_f32 v12, v12, v13")
    E("  v_add_f32 v14, v14, v15")
    E("  v_add_f32 v12, v12, v14")
    for x in (8, 16, 32):
        bperm_xor(11, 12, 9, 8, x)
        E("  v_add_f32 v12, v12, v11")
    E("  v_mul_f32 v12, 0x3b000000, v12")
    E("  v_cvt_pk_bf16_f32 v13, v10, v12")
    E("  v_lshlrev_b32 v10, 16, v13")
    E("  v_and_b32 v12, 0xffff0000, v13")
    E("  v_add_f32 v12, 0x3727c5ac, v12")
    E("  v_cvt_pk_bf16_f32 v13, v12, v12")
    E("  v_lshlrev_b32 v12, 16, v13")
    E("  v_sqrt_f32 v12, v12")
    E("  s_nop 0")
    E("  v_cvt_pk_bf16_f32 v13, v12, v12")
    E("  v_lshlrev_b32 v12, 16, v13")
    E("  v_rcp_f32 v11, v12")
    E("  s_waitcnt vmcnt(8)")
    for i in range(4):
        E(f"  v_lshlrev_b32 v{16+2*i}, 16, v{128+i}")
        E(f"  v_and_b32 v{17+2*i}, 0xffff0000, v{128+i}")
    for i in range(8):
        E(f"  v_sub_f32 v{16+i}, v{16+i}, v10")
    for i in range(4):
        E(f"  v_cvt_pk_bf16_f32 v{24+i}, v{16+2*i}, v{17+2*i}")
    for i in range(4):
        E(f"  v_lshlrev_b32 v{16+2*i}, 16, v{24+i}")
        E(f"  v_and_b32 v{17+2*i}, 0xffff0000, v{24+i}")
    for i in range(8):
        E(f"  v_mul_f32 v{32+i}, v{16+i}, v11")
    for i in range(8):
        E(f"  v_fma_f32 v{40+i}, -v{32+i}, v12, v{16+i}")
    for i in range(8):
        E(f"  v_fma_f32 v{32+i}, v{40+i}, v11, v{32+i}")
    for i in range(4):
        E(f"  v_cvt_pk_bf16_f32 v{24+i}, v{32+2*i}, v{33+2*i}")
    E("  s_waitcnt vmcnt(0)")
    transpose(64, 196, 40, 41)
    E("  s_nop 1")
    for c in range(8):
        E(f"  v_mfma_f32_16x16x32_bf16 v[{132+4*c}:{132+4*c+3}], v[{196+4*c}:{196+4*c+3}], v[24:27], 0")
    E("  v_lshlrev_b32 v9, 6, v3")
    E("  v_lshl_add_u32 v9, v4, 4, v9")
    E("  s_lshl_b32 s35, s14, 12")
    E("  v_add_u32 v9, s35, v9")
    E("  v_cmp_gt_u32 vcc, 8, v3")
    E("  s_and_saveexec_b64 s[36:37], vcc")
    E("  s_nop 7")
    for c in range(8):
        E(f"  ds_write_b128 v9, v[{132+4*c}:{132+4*c+3}] offset:{c*512}")
    E("  s_mov_b64 exec, s[36:37]")
    E("  s_waitcnt lgkmcnt(0)")
    E("  s_barrier")
    E("  v_lshlrev_b32 v9, 4, v0")
    for w in range(4):
        E(f"  ds_read_b128 v[{64+4*w}:{64+4*w+3}], v9 offset:{w*4096}")
    E("  v_lshrrev_b32 v10, 5, v0")
    E("  v_bfe_u32 v11, v0, 2, 3")
    E("  v_and_b32 v12, 3, v0")
    E("  s_movk_i32 s38, 7680")
    E("  v_mul_lo_u32 v11, v11, s38")
    E("  v_lshl_add_u32 v11, v12, 5, v11")
    E("  v_add_u32 v11, v11, v10")
    E("  v_lshlrev_b32 v11, 2, v11")
    E("  s_mul_i32 s39, s16, 8*7680*4")
    E("  s_lshl_b32 s38, s15, 9")
    E("  s_add_u32 s39, s39, s38")
    if YP:
        E(f"  s_add_u32 s39, s39, 0x{YP:x}")
    E("  s_waitcnt lgkmcnt(0)")
    for r in range(4):
        E(f"  v_add_f32 v{64+r}, v{64+r}, v{68+r}")
        E(f"  v_add_f32 v{72+r}, v{72+r}, v{76+r}")
    for r in range(4):
        E(f"  v_add_f32 v{64+r}, v{64+r}, v{72+r}")
    for r in range(4):
        E(f"  buffer_store_dword v{64+r}, v11, s[28:31], s39 offen offset:{r*32}")
    E("L_k1_end:")
    E("  s_endpgm")

RING = [64, 96, 128, 160]
TT = 192
ACC = 224
SC = 32
QR = 192
DD = 16
NT = " nt"

def k2_issue(idx):
    b = RING[idx % 4]
    if idx < 8:
        for t in range(2):
            for c in range(4):
                E(f"  buffer_load_dwordx4 v[{b+16*t+4*c}:{b+16*t+4*c+3}], v5, s[20:23], s{50+t} offen offset:{c*64}{NT}")
        E("  s_add_u32 s50, s50, 8192")
        E("  s_add_u32 s51, s51, 8192")
    else:
        for i in range(8):
            E(f"  buffer_load_dwordx4 v[{b+4*i}:{b+4*i+3}], v6, s[24:27], s{52+(i>>2)} offen offset:{(i&3)*256}{NT}")
        E("  s_add_u32 s52, s52, 8192")
        E("  s_add_u32 s53, s53, 8192")

def gen_k2():
    kernel_begin("attn_kernel")
    E("  s_cmp_ge_u32 s2, 256")
    E("  s_cbranch_scc1 L_k2_end")
    E("  s_load_dwordx4 s[4:7], s[0:1], 8")
    E("  s_load_dwordx2 s[12:13], s[0:1], 88")
    E("  v_and_b32 v1, 63, v0")
    E("  v_lshrrev_b32 v2, 6, v0")
    E("  v_and_b32 v3, 15, v1")
    E("  v_lshrrev_b32 v4, 4, v1")
    E("  v_readfirstlane_b32 s14, v2")
    E("  s_lshr_b32 s15, s2, 2")
    E("  s_and_b32 s16, s2, 3")
    E("  s_mov_b32 s40, 0x05040100")
    E("  s_mov_b32 s41, 0x07060302")
    E(f"  s_mov_b32 s42, 0x{SCALE:x}")
    E(f"  s_mov_b32 s43, 0x{LOG2E:x}")
    E("  s_waitcnt lgkmcnt(0)")
    srd(20, 4, 0x8000000)
    srd(24, 6, 0x8000000)
    srd(28, 12, WS_SIZE)
    E("  s_lshr_b32 s17, s15, 3")
    E("  s_and_b32 s18, s15, 7")
    E("  s_mul_i32 s19, s17, 7680*4")
    E("  s_lshl_b32 s32, s18, 11")
    E("  s_add_u32 s19, s19, s32")
    if YP:
        E(f"  s_add_u32 s19, s19, 0x{YP:x}")
    E("  v_lshlrev_b32 v7, 2, v0")
    for kq in range(4):
        E(f"  buffer_load_dword v{8+kq}, v7, s[28:31], s19 offen")
        if kq < 3:
            E(f"  s_add_u32 s19, s19, {8*7680*4}")
    E("  v_lshlrev_b32 v5, 8, v3")
    E("  v_lshl_add_u32 v5, v4, 4, v5")
    E("  v_lshlrev_b32 v6, 10, v4")
    E("  v_lshl_add_u32 v6, v3, 4, v6")
    E("  s_lshl_b32 s50, s15, 21")
    E("  s_lshl_b32 s32, s16, 19")
    E("  s_add_u32 s50, s50, s32")
    E("  s_lshl_b32 s32, s14, 16")
    E("  s_add_u32 s50, s50, s32")
    E("  s_add_u32 s51, s50, 4096")
    E("  s_mov_b32 s52, s50")
    E("  s_mov_b32 s53, s51")
    for idx in range(4):
        k2_issue(idx)
    E("  s_waitcnt vmcnt(32)")
    E("  v_add_f32 v8, v8, v9")
    E("  v_add_f32 v10, v10, v11")
    E("  v_add_f32 v8, v8, v10")
    E("  v_cvt_pk_bf16_f32 v8, v8, v8")
    E("  v_lshlrev_b32 v9, 1, v0")
    E("  ds_write_b16 v9, v8")
    E("  s_waitcnt lgkmcnt(0)")
    E("  s_barrier")
    E("  v_lshlrev_b32 v9, 8, v3")
    E("  v_lshl_add_u32 v9, v4, 4, v9")
    for c in range(4):
        for k in range(4):
            E(f"  v_mov_b32 v{QR+4*c+k}, 0")
    E("  v_cmp_gt_u32 vcc, 4, v3")
    E("  s_and_saveexec_b64 s[36:37], vcc")
    for c in range(4):
        E(f"  ds_read_b128 v[{QR+4*c}:{QR+4*c+3}], v9 offset:{c*64}")
    E("  s_mov_b64 exec, s[36:37]")
    E("  v_mov_b32 v12, 0xff800000")
    E("  s_waitcnt lgkmcnt(0)")
    E("  s_barrier")
    for idx in range(8):
        b = RING[idx % 4]
        E("  s_waitcnt vmcnt(24)")
        for t in range(2):
            for c in range(4):
                cc = "0" if c == 0 else f"v[{DD+4*t}:{DD+4*t+3}]"
                E(f"  v_mfma_f32_16x16x32_bf16 v[{DD+4*t}:{DD+4*t+3}], v[{b+16*t+4*c}:{b+16*t+4*c+3}], v[{QR+4*c}:{QR+4*c+3}], {cc}")
        k2_issue(idx+4)
        E("  s_nop 1")
        for p in range(4):
            E(f"  v_cvt_pk_bf16_f32 v{24+p}, v{DD+2*p}, v{DD+2*p+1}")
        for p in range(4):
            E(f"  v_lshlrev_b32 v{DD+2*p}, 16, v{24+p}")
            E(f"  v_and_b32 v{DD+2*p+1}, 0xffff0000, v{24+p}")
        for k in range(8):
            E(f"  v_mul_f32 v{DD+k}, s42, v{DD+k}")
        for p in range(4):
            E(f"  v_cvt_pk_bf16_f32 v{SC+4*idx+p}, v{DD+2*p}, v{DD+2*p+1}")
        for p in range(4):
            E(f"  v_max3_f32 v12, v{DD+2*p}, v{DD+2*p+1}, v12")
    E("  v_lshlrev_b32 v8, 2, v1")
    for x in (16, 32):
        bperm_xor(13, 12, 9, 8, x)
        E("  v_max_f32 v12, v12, v13")
    E("  v_cvt_pk_bf16_f32 v13, v12, v12")
    E("  v_lshlrev_b32 v12, 16, v13")
    E("  v_mul_f32 v13, s43, v12")
    E("  v_mov_b32 v14, 0")
    E("  v_mov_b32 v15, 0")
    for idx in range(8, 16):
        j = idx - 8
        b = RING[idx % 4]
        E(f"  ; ---- V tile {j}")
        for p in range(4):
            E(f"  v_lshlrev_b32 v{DD+2*p}, 16, v{SC+4*j+p}")
            E(f"  v_and_b32 v{DD+2*p+1}, 0xffff0000, v{SC+4*j+p}")
        for k in range(8):
            E(f"  v_fma_f32 v{DD+k}, v{DD+k}, s43, -v13")
        for k in range(8):
            E(f"  v_exp_f32 v{DD+k}, v{DD+k}")
        E("  s_nop 0")
        for p in range(4):
            E(f"  v_cvt_pk_bf16_f32 v{24+p}, v{DD+2*p}, v{DD+2*p+1}")
        for p in range(4):
            E(f"  v_add_f32 v14, v14, v{DD+2*p}")
            E(f"  v_add_f32 v15, v15, v{DD+2*p+1}")
        n_out = min(3, 15 - idx) * 8
        E(f"  s_waitcnt vmcnt({n_out})")
        transpose(b, TT, 40, 41)
        E("  s_nop 1")
        for c in range(8):
            cc = "0" if j == 0 else f"v[{ACC+4*c}:{ACC+4*c+3}]"
            E(f"  v_mfma_f32_16x16x32_bf16 v[{ACC+4*c}:{ACC+4*c+3}], v[{TT+4*c}:{TT+4*c+3}], v[24:27], {cc}")
        if idx + 4 < 16:
            k2_issue(idx+4)
    E("  v_add_f32 v14, v14, v15")
    for x in (16, 32):
        bperm_xor(15, 14, 9, 8, x)
        E("  v_add_f32 v14, v14, v15")
    E("  v_lshlrev_b32 v9, 6, v3")
    E("  v_lshl_add_u32 v9, v4, 4, v9")
    E("  s_lshl_b32 s35, s14, 11")
    E("  v_add_u32 v9, s35, v9")
    E("  v_lshlrev_b32 v10, 3, v3")
    E("  s_lshl_b32 s35, s14, 5")
    E("  v_add_u32 v10, s35, v10")
    E("  v_mov_b32 v13, v14")
    E("  v_cmp_gt_u32 vcc, 4, v3")
    E("  s_and_saveexec_b64 s[36:37], vcc")
    for c in range(8):
        E(f"  ds_write_b128 v9, v[{ACC+4*c}:{ACC+4*c+3}] offset:{c*256}")
    E("  ds_write_b64 v10, v[12:13] offset:16384")
    E("  s_mov_b64 exec, s[36:37]")
    E("  s_waitcnt lgkmcnt(0)")
    E("  s_barrier")
    E("  v_lshlrev_b32 v9, 2, v0")
    for w in range(8):
        E(f"  ds_read_b32 v{16+w}, v9 offset:{w*2048}")
    E("  v_bfe_u32 v10, v0, 4, 2")
    E("  v_lshlrev_b32 v11, 3, v10")
    for w in range(8):
        E(f"  ds_read_b64 v[{32+2*w}:{33+2*w}], v11 offset:{16384+w*32}")
    E("  s_waitcnt lgkmcnt(0)")
    E("  v_max3_f32 v12, v32, v34, v36")
    E("  v_max3_f32 v12, v12, v38, v40")
    E("  v_max3_f32 v12, v12, v42, v44")
    E("  v_max_f32 v12, v12, v46")
    for w in range(8):
        E(f"  v_sub_f32 v{48+w}, v{32+2*w}, v12")
    for w in range(8):
        E(f"  v_mul_f32 v{48+w}, s43, v{48+w}")
    for w in range(8):
        E(f"  v_exp_f32 v{48+w}, v{48+w}")
    E("  s_nop 0")
    E("  v_mul_f32 v14, v48, v16")
    E("  v_mul_f32 v13, v48, v33")
    for w in range(1, 8):
        E(f"  v_fmac_f32 v14, v{48+w}, v{16+w}")
        E(f"  v_fmac_f32 v13, v{48+w}, v{33+2*w}")
    E("  v_and_b32 v11, 15, v0")
    E("  v_lshlrev_b32 v11, 3, v11")
    E("  v_lshrrev_b32 v15, 6, v0")
    E("  v_add_u32 v11, v11, v15")
    E("  v_lshl_add_u32 v11, v10, 7, v11")
    E("  v_lshlrev_b32 v11, 2, v11")
    E("  s_lshl_b32 s35, s2, 11")
    E(f"  s_add_u32 s35, s35, 0x{OP:x}")
    E("  buffer_store_dword v14, v11, s[28:31], s35 offen")
    E("  v_and_b32 v11, 0x1cf, v0")
    E("  v_cmp_eq_u32 vcc, 0, v11")
    E("  v_lshlrev_b32 v11, 3, v10")
    E("  s_lshl_b32 s35, s2, 5")
    E(f"  s_add_u32 s35, s35, 0x{ML:x}")
    E("  s_and_saveexec_b64 s[36:37], vcc")
    E("  buffer_store_dwordx2 v[12:13], v11, s[28:31], s35 offen")
    E("L_k2_end:")
    E("  s_endpgm")

def gen_k3():
    kernel_begin("outp_kernel")
    E("  s_cmp_ge_u32 s2, 184")
    E("  s_cbranch_scc1 L_k3_end")
    E("  s_load_dwordx2 s[4:5], s[0:1], 32")
    E("  s_load_dwordx2 s[6:7], s[0:1], 64")
    E("  s_load_dwordx2 s[12:13], s[0:1], 88")
    E("  v_and_b32 v1, 63, v0")
    E("  v_lshrrev_b32 v2, 6, v0")
    E("  v_and_b32 v3, 15, v1")
    E("  v_lshrrev_b32 v4, 4, v1")
    E("  v_readfirstlane_b32 s14, v2")
    E("  s_lshr_b32 s15, s2, 2")
    E("  s_and_b32 s16, s2, 3")
    E("  s_mov_b32 s40, 0x05040100")
    E("  s_mov_b32 s41, 0x07060302")
    E(f"  s_mov_b32 s43, 0x{LOG2E:x}")
    E("  v_and_b32 v5, 7, v3")
    E("  s_waitcnt lgkmcnt(0)")
    srd(28, 12, WS_SIZE)
    E("  v_lshlrev_b32 v7, 13, v4")
    E("  v_lshl_add_u32 v7, v3, 4, v7")
    E("  s_cmp_ge_u32 s15, 32")
    E("  s_cbranch_scc1 L_k3_down")
    srd(24, 4, 4096*1024)
    E("  s_lshl_b32 s19, s15, 2")
    E("  s_add_u32 s19, s19, s14")
    E("  s_lshl_b32 s34, s19, 15")
    E("  s_lshl_b32 s32, s16, 8")
    E("  s_add_u32 s34, s34, s32")
    for i in range(8):
        E(f"  buffer_load_dwordx4 v[{64+4*i}:{64+4*i+3}], v7, s[24:27], s34 offen offset:{(i&3)*1024}")
        if i == 3:
            E("  s_add_u32 s34, s34, 4096")
    E("  s_lshr_b32 s17, s15, 2")
    E("  s_and_b32 s18, s15, 3")
    E("  v_lshlrev_b32 v8, 16, v5")
    E("  v_lshl_add_u32 v8, v4, 5, v8")
    E("  s_lshl_b32 s32, s17, 13")
    E("  s_lshl_b32 s33, s18, 9")
    E("  s_add_u32 s32, s32, s33")
    E("  s_lshl_b32 s33, s14, 7")
    E("  s_add_u32 s32, s32, s33")
    E(f"  s_add_u32 s32, s32, 0x{OP:x}")
    for s in range(4):
        E(f"  buffer_load_dwordx4 v[{96+8*s}:{96+8*s+3}], v8, s[28:31], s32 offen")
        E(f"  buffer_load_dwordx4 v[{100+8*s}:{100+8*s+3}], v8, s[28:31], s32 offen offset:16")
        if s < 3:
            E("  s_add_u32 s32, s32, 2048")
    E("  v_lshlrev_b32 v9, 10, v5")
    E("  s_lshl_b32 s32, s17, 7")
    E("  s_lshl_b32 s33, s18, 3")
    E("  s_add_u32 s32, s32, s33")
    E(f"  s_add_u32 s32, s32, 0x{ML:x}")
    for s in range(4):
        E(f"  buffer_load_dwordx2 v[{128+2*s}:{129+2*s}], v9, s[28:31], s32 offen offset:{s*32}")
    E("  s_waitcnt vmcnt(0)")
    E("  v_max3_f32 v10, v128, v130, v132")
    E("  v_max_f32 v10, v10, v134")
    for s in range(4):
        E(f"  v_sub_f32 v{12+s}, v{128+2*s}, v10")
    for s in range(4):
        E(f"  v_mul_f32 v{12+s}, s43, v{12+s}")
    for s in range(4):
        E(f"  v_exp_f32 v{12+s}, v{12+s}")
    E("  s_nop 0")
    E("  v_mul_f32 v11, v12, v129")
    for s in range(1, 4):
        E(f"  v_fmac_f32 v11, v{12+s}, v{129+2*s}")
    for j in range(8):
        E(f"  v_mul_f32 v{16+j}, v12, v{96+j}")
    for s in range(1, 4):
        for j in range(8):
            E(f"  v_fmac_f32 v{16+j}, v{12+s}, v{96+8*s+j}")
    E("  v_rcp_f32 v10, v11")
    E("  s_nop 0")
    for i in range(8):
        E(f"  v_mul_f32 v{32+i}, v{16+i}, v10")
    for i in range(8):
        E(f"  v_fma_f32 v{40+i}, -v{32+i}, v11, v{16+i}")
    for i in range(8):
        E(f"  v_fma_f32 v{32+i}, v{40+i}, v10, v{32+i}")
    for i in range(4):
        E(f"  v_cvt_pk_bf16_f32 v{24+i}, v{32+2*i}, v{33+2*i}")
    E("  s_branch L_k3_mm")
    E("L_k3_down:")
    srd(24, 6, 1792*1024)
    E("  s_sub_u32 s19, s15, 32")
    E("  s_lshl_b32 s19, s19, 2")
    E("  s_add_u32 s19, s19, s14")
    E("  s_lshl_b32 s34, s19, 15")
    E("  s_lshl_b32 s32, s16, 8")
    E("  s_add_u32 s34, s34, s32")
    for i in range(8):
        E(f"  buffer_load_dwordx4 v[{64+4*i}:{64+4*i+3}], v7, s[24:27], s34 offen offset:{(i&3)*1024}")
        if i == 3:
            E("  s_add_u32 s34, s34, 4096")
    E("  s_movk_i32 s33, 7680*4")
    E("  v_mul_lo_u32 v8, v5, s33")
    E("  v_lshl_add_u32 v8, v4, 5, v8")
    E("  s_lshl_b32 s32, s19, 7")
    E(f"  s_add_u32 s32, s32, {YP + 4096*4}")
    E(f"  s_add_u32 s33, s32, {1792*4}")
    for kq in range(4):
        E(f"  buffer_load_dwordx4 v[{96+8*kq}:{96+8*kq+3}], v8, s[28:31], s32 offen")
        E(f"  buffer_load_dwordx4 v[{100+8*kq}:{100+8*kq+3}], v8, s[28:31], s32 offen offset:16")
        E(f"  buffer_load_dwordx4 v[{128+8*kq}:{128+8*kq+3}], v8, s[28:31], s33 offen")
        E(f"  buffer_load_dwordx4 v[{132+8*kq}:{132+8*kq+3}], v8, s[28:31], s33 offen offset:16")
        if kq < 3:
            E(f"  s_add_u32 s32, s32, {8*7680*4}")
            E(f"  s_add_u32 s33, s33, {8*7680*4}")
    E("  s_waitcnt vmcnt(0)")
    for j in range(8):
        E(f"  v_add_f32 v{96+j}, v{96+j}, v{104+j}")
        E(f"  v_add_f32 v{112+j}, v{112+j}, v{120+j}")
        E(f"  v_add_f32 v{128+j}, v{128+j}, v{136+j}")
        E(f"  v_add_f32 v{144+j}, v{144+j}, v{152+j}")
    for j in range(8):
        E(f"  v_add_f32 v{96+j}, v{96+j}, v{112+j}")
        E(f"  v_add_f32 v{128+j}, v{128+j}, v{144+j}")
    for j in range(8):
        E(f"  v_cvt_pk_bf16_f32 v{16+j}, v{96+j}, v{128+j}")
    for j in range(8):
        E(f"  v_lshlrev_b32 v{96+j}, 16, v{16+j}")
        E(f"  v_and_b32 v{128+j}, 0xffff0000, v{16+j}")
    for j in range(8):
        E(f"  v_max_f32 v{96+j}, 0, v{96+j}")
    for j in range(8):
        E(f"  v_mul_f32 v{96+j}, v{96+j}, v{128+j}")
    for i in range(4):
        E(f"  v_cvt_pk_bf16_f32 v{24+i}, v{96+2*i}, v{97+2*i}")
    E("L_k3_mm:")
    transpose(64, 196, 40, 41)
    E("  s_nop 1")
    for c in range(8):
        E(f"  v_mfma_f32_16x16x32_bf16 v[{132+4*c}:{132+4*c+3}], v[{196+4*c}:{196+4*c+3}], v[24:27], 0")
    E("  v_lshlrev_b32 v9, 6, v3")
    E("  v_lshl_add_u32 v9, v4, 4, v9")
    E("  s_lshl_b32 s35, s14, 12")
    E("  v_add_u32 v9, s35, v9")
    E("  v_cmp_gt_u32 vcc, 8, v3")
    E("  s_and_saveexec_b64 s[36:37], vcc")
    E("  s_nop 7")
    for c in range(8):
        E(f"  ds_write_b128 v9, v[{132+4*c}:{132+4*c+3}] offset:{c*512}")
    E("  s_mov_b64 exec, s[36:37]")
    E("  s_waitcnt lgkmcnt(0)")
    E("  s_barrier")
    E("  v_lshlrev_b32 v9, 4, v0")
    for w in range(4):
        E(f"  ds_read_b128 v[{64+4*w}:{64+4*w+3}], v9 offset:{w*4096}")
    E("  v_lshrrev_b32 v10, 5, v0")
    E("  v_bfe_u32 v11, v0, 2, 3")
    E("  v_and_b32 v12, 3, v0")
    E("  v_lshlrev_b32 v11, 9, v11")
    E("  v_lshl_add_u32 v11, v12, 5, v11")
    E("  v_add_u32 v11, v11, v10")
    E("  v_lshlrev_b32 v11, 2, v11")
    E("  s_lshl_b32 s39, s15, 14")
    E("  s_lshl_b32 s38, s16, 9")
    E("  s_add_u32 s39, s39, s38")
    E(f"  s_add_u32 s39, s39, 0x{P3:x}")
    E("  s_waitcnt lgkmcnt(0)")
    for r in range(4):
        E(f"  v_add_f32 v{64+r}, v{64+r}, v{68+r}")
        E(f"  v_add_f32 v{72+r}, v{72+r}, v{76+r}")
    for r in range(4):
        E(f"  v_add_f32 v{64+r}, v{64+r}, v{72+r}")
    for r in range(4):
        E(f"  buffer_store_dword v{64+r}, v11, s[28:31], s39 offen offset:{r*32}")
    E("L_k3_end:")
    E("  s_endpgm")

def gen_k4():
    kernel_begin("final_kernel")
    E("  s_cmp_ge_u32 s2, 64")
    E("  s_cbranch_scc1 L_k4_end")
    E("  s_load_dwordx2 s[4:5], s[0:1], 0")
    E("  s_load_dwordx2 s[6:7], s[0:1], 72")
    E("  s_load_dwordx2 s[12:13], s[0:1], 88")
    E("  s_lshl_b32 s3, s2, 6")
    E("  v_add_u32 v1, s3, v0")
    E("  v_lshlrev_b32 v2, 2, v1")
    E("  v_lshlrev_b32 v3, 1, v1")
    E("  s_waitcnt lgkmcnt(0)")
    srd(20, 4, 8192)
    srd(24, 6, 8192)
    srd(28, 12, WS_SIZE)
    E("  buffer_load_ushort v4, v3, s[20:23], 0 offen")
    E(f"  s_mov_b32 s32, 0x{P3:x}")
    for i in range(46):
        E(f"  buffer_load_dword v{16+i}, v2, s[28:31], s32 offen")
        if i < 45:
            E("  s_add_u32 s32, s32, 16384")
    E("  s_waitcnt vmcnt(0)")
    for k in range(4):
        E(f"  v_add_f32 v{8+k}, v{16+k}, v{20+k}")
    for i in range(8, 32, 4):
        for k in range(4):
            E(f"  v_add_f32 v{8+k}, v{8+k}, v{16+i+k}")
    E("  v_add_f32 v8, v8, v9")
    E("  v_add_f32 v10, v10, v11")
    E("  v_add_f32 v8, v8, v10")
    E("  v_add_f32 v9, v48, v49")
    E("  v_add_f32 v10, v50, v51")
    for i in range(52, 62, 2):
        E(f"  v_add_f32 v9, v9, v{i}")
        E(f"  v_add_f32 v10, v10, v{i+1}")
    E("  v_add_f32 v9, v9, v10")
    E("  v_cvt_pk_bf16_f32 v10, v8, v9")
    E("  v_lshlrev_b32 v8, 16, v10")
    E("  v_and_b32 v9, 0xffff0000, v10")
    E(f"  v_mul_f32 v10, 0x{LOG2E ^ 0x80000000:x}, v9")
    E("  v_exp_f32 v10, v10")
    E("  s_nop 0")
    E("  v_add_f32 v10, 1.0, v10")
    E("  v_rcp_f32 v11, v10")
    E("  s_nop 0")
    E("  v_mul_f32 v12, v9, v11")
    E("  v_cvt_pk_bf16_f32 v12, v12, v12")
    E("  v_lshlrev_b32 v12, 16, v12")
    E("  v_mul_f32 v12, v8, v12")
    E("  v_cvt_pk_bf16_f32 v12, v12, v12")
    E("  v_lshlrev_b32 v12, 16, v12")
    E("  v_lshlrev_b32 v4, 16, v4")
    E("  v_add_f32 v12, v4, v12")
    E("  v_cvt_pk_bf16_f32 v12, v12, v12")
    E("  buffer_store_short v12, v3, s[24:27], 0 offen")
    E("L_k4_end:")
    E("  s_endpgm")

def kd(name, vgpr, sgpr=64):
    E(f".amdhsa_kernel {name}")
    E(f"  .amdhsa_next_free_vgpr {vgpr}")
    E(f"  .amdhsa_next_free_sgpr {sgpr}")
    E(f"  .amdhsa_accum_offset {((vgpr+3)//4)*4}")
    E("  .amdhsa_group_segment_fixed_size 0")
    E("  .amdhsa_kernarg_size 96")
    E("  .amdhsa_user_sgpr_count 2")
    E("  .amdhsa_user_sgpr_kernarg_segment_ptr 1")
    E("  .amdhsa_system_sgpr_workgroup_id_x 1")
    E("  .amdhsa_float_denorm_mode_32 3")
    E(".end_amdhsa_kernel")

E("; @launch kernel=proj_kernel grid=(240,1,1) block=(256,1,1) lds=16384")
E("; @launch kernel=attn_kernel grid=(256,1,1) block=(512,1,1) lds=16640")
E("; @launch kernel=outp_kernel grid=(184,1,1) block=(256,1,1) lds=16384")
E("; @launch kernel=final_kernel grid=(64,1,1) block=(64,1,1) lds=0")
E('.amdgcn_target "amdgcn-amd-amdhsa--gfx950"')
E(".text")
gen_k1()
gen_k2()
gen_k3()
gen_k4()
E('.section .rodata,"a"')
E(".p2align 6")
kd("proj_kernel", 228)
E(".p2align 6")
kd("attn_kernel", 256)
E(".p2align 6")
kd("outp_kernel", 228)
E(".p2align 6")
kd("final_kernel", 64)
out = [o for o in out if o is not None]
open(sys.argv[1] if len(sys.argv) > 1 else f"cdna_kernels/{NAME}.s", "w").write("\n".join(out) + "\n")
```

```python
import sys

NAME = "recurrent_scan__gqa_block_cached__glu_gated_reglu__decode"
out = []
def E(s=""):
    out.append(s)

QP = 0x0
FP = 0x100000
OP = 0x200000
ML = 0x280000
P3 = 0x290000
WS_SIZE = 0x20000000
CQ = 0
CF = 32
CA = 128
CS = 192
L_RED = 0
L_ML = 32768
L_Q = 33024
L_FLAG = 34048
L_SIZE = 34304
LOG2E = 0x3FB8AA3B
SCALE = 0x3DB504F3

S_K, S_V, S_WS, S_DBG, S_X, S_W, S_W2, S_OUT = 28, 32, 36, 40, 44, 48, 52, 56
SW, SPAIR, SSPLIT, SB, SKVH = 60, 61, 62, 63, 64
SLO, SHI, SSC, SL2E = 70, 71, 72, 73
SK0, SK1, SV0, SV1 = 74, 75, 76, 77
SROLE = 65
ST0, ST1 = 66, 67
SRID = 68
EX = 80

RING = [64, 96, 128, 160]
TT = 192
ACC = 224
SC = 32
QR = 192
DD = 16
NT = " nt"
SPIN = 200000

def srd(d, ptr, size):
    E(f"  s_mov_b32 s{d}, s{ptr}")
    E(f"  s_mov_b32 s{d+1}, s{ptr+1}")
    E(f"  s_mov_b32 s{d+2}, 0x{size:x}")
    E(f"  s_mov_b32 s{d+3}, 0x00020000")

def transpose(S, T):
    for q in range(4):
        for e in range(2):
            c = 2*q+e
            for p in range(4):
                sel = SLO if e == 0 else SHI
                E(f"  v_perm_b32 v{T+4*c+p}, v{S+4*(2*p+1)+q}, v{S+4*(2*p)+q}, s{sel}")

def bperm_xor(dst, src, addr_tmp, lane4, x):
    E(f"  v_xor_b32 v{addr_tmp}, {x*4}, v{lane4}")
    E(f"  ds_bpermute_b32 v{dst}, v{addr_tmp}, v{src}")
    E("  s_waitcnt lgkmcnt(0)")

def issue_tile(idx):
    b = RING[idx % 4]
    if idx < 8:
        for t in range(2):
            for c in range(4):
                E(f"  buffer_load_dwordx4 v[{b+16*t+4*c}:{b+16*t+4*c+3}], v5, s[{S_K}:{S_K+3}], s{SK0+t} offen offset:{c*64}{NT}")
        E(f"  s_add_u32 s{SK0}, s{SK0}, 8192")
        E(f"  s_add_u32 s{SK1}, s{SK1}, 8192")
    else:
        for i in range(8):
            E(f"  buffer_load_dwordx4 v[{b+4*i}:{b+4*i+3}], v6, s[{S_V}:{S_V+3}], s{SV0+(i>>2)} offen offset:{(i&3)*256}{NT}")
        E(f"  s_add_u32 s{SV0}, s{SV0}, 8192")
        E(f"  s_add_u32 s{SV1}, s{SV1}, 8192")

def issue_tailw(j):
    b = RING[j]
    s = ST0 + j
    for i in range(8):
        E(f"  buffer_load_dwordx4 v[{b+4*i}:{b+4*i+3}], v7, s[{S_W}:{S_W+3}], s{s} offen")
        if i < 7:
            E(f"  s_add_u32 s{s}, s{s}, 8192")

lbl = [0]
def poll(counter_off_sgpr, target):
    lbl[0] += 1
    L = f"L_poll{lbl[0]}"
    E(f"  v_mov_b32 v8, s{counter_off_sgpr}")
    E(f"  s_mov_b32 s82, {SPIN}")
    E(f"{L}:")
    E(f"  buffer_load_dword v9, v8, s[{S_DBG}:{S_DBG+3}], 0 offen sc1")
    E("  s_waitcnt vmcnt(0)")
    E("  v_readfirstlane_b32 s83, v9")
    E("  s_nop 3")
    E(f"  s_cmp_ge_u32 s83, {target}")
    E(f"  s_cbranch_scc1 {L}_done")
    E("  s_sub_u32 s82, s82, 1")
    E("  s_cmp_eq_u32 s82, 0")
    E(f"  s_cbranch_scc1 {L}_done")
    E("  s_sleep 4")
    E(f"  s_branch {L}")
    E(f"{L}_done:")

def atomic_inc(counter_off_sgpr, ret=None):
    E(f"  v_mov_b32 v8, s{counter_off_sgpr}")
    E("  v_mov_b32 v9, 1")
    E(f"  s_mov_b64 s[{EX}:{EX+1}], exec")
    E("  s_mov_b64 exec, 1")
    if ret:
        E(f"  buffer_atomic_add v9, v8, s[{S_DBG}:{S_DBG+3}], 0 offen sc0 sc1")
    else:
        E(f"  buffer_atomic_add v9, v8, s[{S_DBG}:{S_DBG+3}], 0 offen sc1")
    E(f"  s_mov_b64 exec, s[{EX}:{EX+1}]")

def gen():
    K = NAME + "_kernel"
    E(f".globl {K}")
    E(".p2align 8")
    E(f".type {K},@function")
    E(f"{K}:")
    E("  s_cmp_ge_u32 s2, 256")
    E("  s_cbranch_scc1 L_end")
    E("  s_load_dwordx16 s[4:19], s[0:1], 0")
    E("  s_load_dwordx8 s[20:27], s[0:1], 64")
    E("  v_and_b32 v1, 63, v0")
    E("  v_lshrrev_b32 v2, 6, v0")
    E("  v_and_b32 v3, 15, v1")
    E("  v_lshrrev_b32 v4, 4, v1")
    E(f"  v_readfirstlane_b32 s{SW}, v2")
    E(f"  s_lshr_b32 s{SPAIR}, s2, 2")
    E(f"  s_and_b32 s{SSPLIT}, s2, 3")
    E(f"  s_lshr_b32 s{SB}, s{SPAIR}, 3")
    E(f"  s_and_b32 s{SKVH}, s{SPAIR}, 7")
    E(f"  s_mov_b32 s{SLO}, 0x05040100")
    E(f"  s_mov_b32 s{SHI}, 0x07060302")
    E(f"  s_mov_b32 s{SSC}, 0x{SCALE:x}")
    E(f"  s_mov_b32 s{SL2E}, 0x{LOG2E:x}")
    E("  v_lshlrev_b32 v5, 8, v3")
    E("  v_lshl_add_u32 v5, v4, 4, v5")
    E("  v_lshlrev_b32 v6, 10, v4")
    E("  v_lshl_add_u32 v6, v3, 4, v6")
    E(f"  s_lshl_b32 s{SK0}, s{SPAIR}, 21")
    E(f"  s_lshl_b32 s84, s{SSPLIT}, 19")
    E(f"  s_add_u32 s{SK0}, s{SK0}, s84")
    E(f"  s_lshl_b32 s84, s{SW}, 16")
    E(f"  s_add_u32 s{SK0}, s{SK0}, s84")
    E(f"  s_add_u32 s{SK1}, s{SK0}, 4096")
    E(f"  s_mov_b32 s{SV0}, s{SK0}")
    E(f"  s_mov_b32 s{SV1}, s{SK1}")
    E("  s_waitcnt lgkmcnt(0)")
    srd(S_K, 6, 0x8000000)
    srd(S_V, 8, 0x8000000)
    srd(S_WS, 26, WS_SIZE)
    srd(S_DBG, 24, 256)
    srd(S_X, 4, 8192)
    srd(S_OUT, 22, 8192)
    E(f"  s_cmp_eq_u32 s{SW}, 0")
    E("  s_cbranch_scc1 L_helper")
    for idx in range(4):
        issue_tile(idx)
    E("  s_branch L_join")
    E("L_helper:")
    E("  s_and_b32 s84, s2, 7")
    E("  s_lshr_b32 s85, s2, 3")
    srd(S_W, 10, 512*8192)
    E("  s_cmp_lt_u32 s85, 14")
    E("  s_cselect_b32 s86, s16, s18")
    E("  s_cselect_b32 s87, s17, s19")
    E("  s_cselect_b32 s88, 0, 14")
    E("  s_sub_u32 s88, s85, s88")
    E(f"  s_mov_b32 s{S_W2}, s86")
    E(f"  s_mov_b32 s{S_W2+1}, s87")
    E(f"  s_mov_b32 s{S_W2+2}, 0x{512*3584:x}")
    E(f"  s_mov_b32 s{S_W2+3}, 0x00020000")
    E("  s_cmp_lt_u32 s2, 224")
    E("  s_cbranch_scc1 L_h_guok")
    E(f"  s_mov_b32 s{S_W2+2}, 0")
    E("L_h_guok:")
    E("  v_and_b32 v8, 7, v1")
    E("  v_lshrrev_b32 v9, 3, v1")
    E("  v_lshlrev_b32 v8, 10, v8")
    E("  v_lshl_add_u32 v8, v9, 7, v8")
    for i in range(8):
        E(f"  buffer_load_dwordx4 v[{96+4*i}:{96+4*i+3}], v8, s[{S_X}:{S_X+3}], 0 offen offset:{16*i}")
    E("  v_and_b32 v9, 7, v3")
    E("  v_lshlrev_b32 v9, 10, v9")
    E("  v_lshl_add_u32 v9, v4, 4, v9")
    E("  s_lshl_b32 s89, s84, 7")
    E(f"  buffer_load_dwordx4 v[24:27], v9, s[{S_X}:{S_X+3}], s89 offen")
    E(f"  buffer_load_dwordx4 v[28:31], v9, s[{S_X}:{S_X+3}], s89 offen offset:64")
    E("  v_lshlrev_b32 v10, 16, v4")
    E("  v_lshl_add_u32 v10, v3, 4, v10")
    E("  s_lshl_b32 s89, s84, 19")
    E("  s_lshl_b32 s90, s85, 8")
    E("  s_add_u32 s89, s89, s90")
    for ks in range(2):
        for i in range(8):
            r = 192 + 32*ks + 4*i
            E(f"  buffer_load_dwordx4 v[{r}:{r+3}], v10, s[{S_W}:{S_W+3}], s89 offen")
            E(f"  s_add_u32 s89, s89, {8192 if i < 7 else 8192*25}")
    E("  s_movk_i32 s90, 3584*8")
    E("  v_mul_lo_u32 v11, v4, s90")
    E("  v_lshl_add_u32 v11, v3, 4, v11")
    E("  s_mul_i32 s89, s84, 64*3584")
    E("  s_lshl_b32 s90, s88, 8")
    E("  s_add_u32 s89, s89, s90")
    for ks in range(2):
        for i in range(8):
            r = 32 + 32*ks + 4*i
            E(f"  buffer_load_dwordx4 v[{r}:{r+3}], v11, s[{S_W2}:{S_W2+3}], s89 offen")
            E(f"  s_add_u32 s89, s89, {3584 if i < 7 else 3584*25}")
    E("  v_lshlrev_b32 v8, 2, v1")
    E("  s_waitcnt vmcnt(34)")
    for i in range(32):
        E(f"  v_lshlrev_b32 v{128+2*i}, 16, v{96+i}")
        E(f"  v_and_b32 v{129+2*i}, 0xffff0000, v{96+i}")
    for k in range(4):
        E(f"  v_add_f32 v{12+k}, v{128+k}, v{132+k}")
    for i in range(8, 64, 4):
        for k in range(4):
            E(f"  v_add_f32 v{12+k}, v{12+k}, v{128+i+k}")
    E("  v_add_f32 v12, v12, v13")
    E("  v_add_f32 v14, v14, v15")
    E("  v_add_f32 v12, v12, v14")
    for x in (8, 16, 32):
        bperm_xor(13, 12, 9, 8, x)
        E("  v_add_f32 v12, v12, v13")
    E("  v_mul_f32 v12, 0x3b000000, v12")
    for k in range(4):
        E(f"  v_mov_b32 v{96+k}, 0")
    for i in range(0, 64, 4):
        for k in range(4):
            E(f"  v_sub_f32 v{100+k}, v{128+i+k}, v12")
        for k in range(4):
            E(f"  v_fmac_f32 v{96+k}, v{100+k}, v{100+k}")
    E("  v_add_f32 v96, v96, v97")
    E("  v_add_f32 v98, v98, v99")
    E("  v_add_f32 v14, v96, v98")
    for x in (8, 16, 32):
        bperm_xor(13, 14, 9, 8, x)
        E("  v_add_f32 v14, v14, v13")
    E("  v_mul_f32 v14, 0x3b000000, v14")
    E("  v_cvt_pk_bf16_f32 v13, v12, v14")
    E("  v_lshlrev_b32 v12, 16, v13")
    E("  v_and_b32 v14, 0xffff0000, v13")
    E("  v_add_f32 v14, 0x3727c5ac, v14")
    E("  v_cvt_pk_bf16_f32 v13, v14, v14")
    E("  v_lshlrev_b32 v14, 16, v13")
    E("  v_sqrt_f32 v14, v14")
    E("  s_nop 0")
    E("  v_cvt_pk_bf16_f32 v13, v14, v14")
    E("  v_lshlrev_b32 v14, 16, v13")
    E("  v_rcp_f32 v15, v14")
    E("  s_waitcnt vmcnt(32)")
    for i in range(8):
        E(f"  v_lshlrev_b32 v{96+2*i}, 16, v{24+i}")
        E(f"  v_and_b32 v{97+2*i}, 0xffff0000, v{24+i}")
    for i in range(16):
        E(f"  v_sub_f32 v{96+i}, v{96+i}, v12")
    for i in range(8):
        E(f"  v_cvt_pk_bf16_f32 v{24+i}, v{96+2*i}, v{97+2*i}")
    for i in range(8):
        E(f"  v_lshlrev_b32 v{96+2*i}, 16, v{24+i}")
        E(f"  v_and_b32 v{97+2*i}, 0xffff0000, v{24+i}")
    for i in range(16):
        E(f"  v_mul_f32 v{112+i}, v{96+i}, v15")
    for i in range(16):
        E(f"  v_fma_f32 v{128+i}, -v{112+i}, v14, v{96+i}")
    for i in range(16):
        E(f"  v_fma_f32 v{112+i}, v{128+i}, v15, v{112+i}")
    for i in range(8):
        E(f"  v_cvt_pk_bf16_f32 v{16+i}, v{112+2*i}, v{113+2*i}")
    E("  v_lshlrev_b32 v12, 9, v3")
    E("  v_lshl_add_u32 v12, v4, 4, v12")
    E("  v_cmp_gt_u32 vcc, 8, v3")
    E(f"  s_mov_b64 s[92:93], vcc")
    E("  s_waitcnt vmcnt(16)")
    for ks in range(2):
        transpose(192 + 32*ks, 128)
        E("  s_nop 1")
        for c in range(8):
            cc = "0" if ks == 0 else f"v[{160+4*c}:{160+4*c+3}]"
            E(f"  v_mfma_f32_16x16x32_bf16 v[{160+4*c}:{160+4*c+3}], v[{128+4*c}:{128+4*c+3}], v[{16+4*ks}:{19+4*ks}], {cc}")
    E("  s_lshl_b32 s89, s84, 5")
    E("  s_add_u32 s89, s89, s85")
    E("  s_lshl_b32 s89, s89, 12")
    if QP:
        E(f"  s_add_u32 s89, s89, 0x{QP:x}")
    E(f"  s_mov_b64 s[{EX}:{EX+1}], exec")
    E("  s_mov_b64 exec, s[92:93]")
    E("  s_nop 4")
    for c in range(8):
        E(f"  buffer_store_dwordx4 v[{160+4*c}:{160+4*c+3}], v12, s[{S_WS}:{S_WS+3}], s89 offen offset:{c*64} sc1")
    E(f"  s_mov_b64 exec, s[{EX}:{EX+1}]")
    E("  s_cmp_ge_u32 s2, 224")
    E("  s_cbranch_scc1 L_h_nogu")
    E("  s_waitcnt vmcnt(8)")
    for ks in range(2):
        transpose(32 + 32*ks, 128)
        E("  s_nop 1")
        for c in range(8):
            cc = "0" if ks == 0 else f"v[{192+4*c}:{192+4*c+3}]"
            E(f"  v_mfma_f32_16x16x32_bf16 v[{192+4*c}:{192+4*c+3}], v[{128+4*c}:{128+4*c+3}], v[{16+4*ks}:{19+4*ks}], {cc}")
    E("  s_mul_i32 s89, s84, 28")
    E("  s_add_u32 s89, s89, s85")
    E("  s_lshl_b32 s89, s89, 12")
    E(f"  s_add_u32 s89, s89, 0x{FP:x}")
    E(f"  s_mov_b64 s[{EX}:{EX+1}], exec")
    E("  s_mov_b64 exec, s[92:93]")
    E("  s_nop 4")
    for c in range(8):
        E(f"  buffer_store_dwordx4 v[{192+4*c}:{192+4*c+3}], v12, s[{S_WS}:{S_WS+3}], s89 offen offset:{c*64} sc1")
    E(f"  s_mov_b64 exec, s[{EX}:{EX+1}]")
    E("  s_waitcnt vmcnt(0)")
    E(f"  s_mov_b32 s89, {CF}")
    atomic_inc(89)
    E("L_h_nogu:")
    E("  s_waitcnt vmcnt(0)")
    E("  s_lshr_b32 s89, s85, 2")
    E("  s_lshl_b32 s89, s89, 2")
    if CQ:
        E(f"  s_add_u32 s89, s89, {CQ}")
    atomic_inc(89)
    E(f"  s_lshl_b32 s89, s{SKVH}, 2")
    if CQ:
        E(f"  s_add_u32 s89, s89, {CQ}")
    poll(89, 32)
    E("  v_lshrrev_b32 v10, 5, v1")
    E("  v_and_b32 v11, 31, v1")
    E("  v_lshlrev_b32 v12, 12, v10")
    E("  v_lshl_add_u32 v12, v11, 4, v12")
    E(f"  s_lshl_b32 s89, s{SKVH}, 14")
    E(f"  s_lshl_b32 s90, s{SB}, 9")
    E("  s_add_u32 s89, s89, s90")
    if QP:
        E(f"  s_add_u32 s89, s89, 0x{QP:x}")
    E("  s_add_u32 s90, s89, 8192")
    for kc in range(8):
        E(f"  buffer_load_dwordx4 v[{64+4*kc}:{64+4*kc+3}], v12, s[{S_WS}:{S_WS+3}], s89 offen sc1")
        E(f"  buffer_load_dwordx4 v[{96+4*kc}:{96+4*kc+3}], v12, s[{S_WS}:{S_WS+3}], s90 offen sc1")
        if kc < 7:
            E("  s_add_u32 s89, s89, 131072")
            E("  s_add_u32 s90, s90, 131072")
    E("  v_and_b32 v13, 3, v11")
    E("  v_lshrrev_b32 v14, 2, v11")
    E("  v_lshlrev_b32 v13, 5, v13")
    E("  v_add_u32 v13, v13, v14")
    E("  v_lshl_add_u32 v13, v10, 7, v13")
    E("  v_lshlrev_b32 v13, 1, v13")
    E("  s_waitcnt vmcnt(0)")
    for half in range(2):
        b0 = 64 + 32*half
        for r in range(4):
            E(f"  v_add_f32 v{b0+r}, v{b0+r}, v{b0+4+r}")
            E(f"  v_add_f32 v{b0+8+r}, v{b0+8+r}, v{b0+12+r}")
            E(f"  v_add_f32 v{b0+16+r}, v{b0+16+r}, v{b0+20+r}")
            E(f"  v_add_f32 v{b0+24+r}, v{b0+24+r}, v{b0+28+r}")
        for r in range(4):
            E(f"  v_add_f32 v{b0+r}, v{b0+r}, v{b0+8+r}")
            E(f"  v_add_f32 v{b0+16+r}, v{b0+16+r}, v{b0+24+r}")
        for r in range(4):
            E(f"  v_add_f32 v{b0+r}, v{b0+r}, v{b0+16+r}")
        E(f"  v_cvt_pk_bf16_f32 v{b0+4}, v{b0}, v{b0+1}")
        E(f"  v_cvt_pk_bf16_f32 v{b0+5}, v{b0+2}, v{b0+3}")
        E(f"  ds_write_b16 v13, v{b0+4} offset:{L_Q+half*512}")
        E(f"  ds_write_b16_d16_hi v13, v{b0+4} offset:{L_Q+half*512+16}")
        E(f"  ds_write_b16 v13, v{b0+5} offset:{L_Q+half*512+32}")
        E(f"  ds_write_b16_d16_hi v13, v{b0+5} offset:{L_Q+half*512+48}")
    E("  s_waitcnt lgkmcnt(0)")
    for idx in range(4):
        issue_tile(idx)
    E("L_join:")
    E(f"  s_mov_b32 s{SROLE}, 0")
    E(f"  s_mov_b32 s{SRID}, 0")
    E(f"  s_mov_b32 s{ST0}, 0")
    E(f"  s_mov_b32 s{ST1}, 0")
    srd(S_W, 12, 4096*1024)
    E(f"  s_cmp_ge_u32 s{SB}, 4")
    E("  s_cbranch_scc1 L_norole")
    E(f"  s_cmp_eq_u32 s{SSPLIT}, 0")
    E("  s_cbranch_scc1 L_role_wo")
    E(f"  s_cmp_lg_u32 s{SSPLIT}, 1")
    E("  s_cbranch_scc1 L_norole")
    E(f"  s_cmp_ge_u32 s{SKVH}, 7")
    E("  s_cbranch_scc1 L_norole")
    srd(S_W, 20, 1792*1024)
    E(f"  s_mov_b32 s{SROLE}, 2")
    E(f"  s_lshl_b32 s84, s{SKVH}, 2")
    E(f"  s_add_u32 s84, s84, s{SB}")
    E(f"  s_add_u32 s{SRID}, s84, 32")
    E(f"  s_lshl_b32 s84, s{SKVH}, 1")
    E(f"  s_lshr_b32 s85, s{SW}, 2")
    E("  s_add_u32 s84, s84, s85")
    E("  s_lshl_b32 s84, s84, 7")
    E(f"  s_and_b32 s85, s{SW}, 3")
    E("  s_lshl_b32 s85, s85, 1")
    E("  s_add_u32 s84, s84, s85")
    E("  s_lshl_b32 s84, s84, 10")
    E(f"  s_lshl_b32 s85, s{SB}, 8")
    E(f"  s_add_u32 s{ST0}, s84, s85")
    E(f"  s_mov_b32 s{ST1}, 0x7f000000")
    E("  s_branch L_roledone")
    E("L_role_wo:")
    E(f"  s_mov_b32 s{SROLE}, 1")
    E(f"  s_lshl_b32 s84, s{SKVH}, 2")
    E(f"  s_add_u32 s{SRID}, s84, s{SB}")
    E(f"  s_lshr_b32 s85, s{SW}, 1")
    E("  s_add_u32 s84, s84, s85")
    E("  s_lshl_b32 s84, s84, 7")
    E(f"  s_and_b32 s85, s{SW}, 1")
    E("  s_lshl_b32 s85, s85, 2")
    E("  s_add_u32 s84, s84, s85")
    E("  s_lshl_b32 s84, s84, 10")
    E(f"  s_lshl_b32 s85, s{SB}, 8")
    E(f"  s_add_u32 s{ST0}, s84, s85")
    E(f"  s_add_u32 s{ST1}, s{ST0}, 2048")
    E("  s_branch L_roledone")
    E("L_norole:")
    E(f"  s_mov_b32 s{S_W+2}, 0")
    E("L_roledone:")
    E("  v_and_b32 v7, 1, v4")
    E("  v_lshlrev_b32 v7, 6, v7")
    E("  v_lshrrev_b32 v8, 1, v4")
    E("  v_add_u32 v7, v7, v8")
    E("  v_lshlrev_b32 v7, 10, v7")
    E("  v_lshl_add_u32 v7, v3, 4, v7")
    E("  s_barrier")
    E("  v_lshlrev_b32 v9, 8, v3")
    E("  v_lshl_add_u32 v9, v4, 4, v9")
    for c in range(4):
        for k in range(4):
            E(f"  v_mov_b32 v{QR+4*c+k}, 0")
    E("  v_cmp_gt_u32 vcc, 4, v3")
    E(f"  s_and_saveexec_b64 s[{EX}:{EX+1}], vcc")
    for c in range(4):
        E(f"  ds_read_b128 v[{QR+4*c}:{QR+4*c+3}], v9 offset:{L_Q+c*64}")
    E(f"  s_mov_b64 exec, s[{EX}:{EX+1}]")
    E("  v_mov_b32 v12, 0xff800000")
    E("  s_waitcnt lgkmcnt(0)")
    for idx in range(8):
        b = RING[idx % 4]
        E("  s_waitcnt vmcnt(24)")
        for t in range(2):
            for c in range(4):
                cc = "0" if c == 0 else f"v[{DD+4*t}:{DD+4*t+3}]"
                E(f"  v_mfma_f32_16x16x32_bf16 v[{DD+4*t}:{DD+4*t+3}], v[{b+16*t+4*c}:{b+16*t+4*c+3}], v[{QR+4*c}:{QR+4*c+3}], {cc}")
        issue_tile(idx+4)
        E("  s_nop 1")
        for p in range(4):
            E(f"  v_cvt_pk_bf16_f32 v{24+p}, v{DD+2*p}, v{DD+2*p+1}")
        for p in range(4):
            E(f"  v_lshlrev_b32 v{DD+2*p}, 16, v{24+p}")
            E(f"  v_and_b32 v{DD+2*p+1}, 0xffff0000, v{24+p}")
        for k in range(8):
            E(f"  v_mul_f32 v{DD+k}, s{SSC}, v{DD+k}")
        for p in range(4):
            E(f"  v_cvt_pk_bf16_f32 v{SC+4*idx+p}, v{DD+2*p}, v{DD+2*p+1}")
        for p in range(4):
            E(f"  v_max3_f32 v12, v{DD+2*p}, v{DD+2*p+1}, v12")
    E("  v_lshlrev_b32 v8, 2, v1")
    for x in (16, 32):
        bperm_xor(13, 12, 9, 8, x)
        E("  v_max_f32 v12, v12, v13")
    E("  v_cvt_pk_bf16_f32 v13, v12, v12")
    E("  v_lshlrev_b32 v12, 16, v13")
    E(f"  v_mul_f32 v13, s{SL2E}, v12")
    E("  v_mov_b32 v14, 0")
    E("  v_mov_b32 v15, 0")
    for idx in range(8, 16):
        j = idx - 8
        b = RING[idx % 4]
        E(f"  ; ---- V tile {j}")
        for p in range(4):
            E(f"  v_lshlrev_b32 v{DD+2*p}, 16, v{SC+4*j+p}")
            E(f"  v_and_b32 v{DD+2*p+1}, 0xffff0000, v{SC+4*j+p}")
        for k in range(8):
            E(f"  v_fma_f32 v{DD+k}, v{DD+k}, s{SL2E}, -v13")
        for k in range(8):
            E(f"  v_exp_f32 v{DD+k}, v{DD+k}")
        E("  s_nop 0")
        for p in range(4):
            E(f"  v_cvt_pk_bf16_f32 v{24+p}, v{DD+2*p}, v{DD+2*p+1}")
        for p in range(4):
            E(f"  v_add_f32 v14, v14, v{DD+2*p}")
            E(f"  v_add_f32 v15, v15, v{DD+2*p+1}")
        n_tiles = min(3, 15 - idx)
        n_tw = max(0, min(2, idx - 12))
        E(f"  s_waitcnt vmcnt({(n_tiles + n_tw) * 8})")
        transpose(b, TT)
        E("  s_nop 1")
        for c in range(8):
            cc = "0" if j == 0 else f"v[{ACC+4*c}:{ACC+4*c+3}]"
            E(f"  v_mfma_f32_16x16x32_bf16 v[{ACC+4*c}:{ACC+4*c+3}], v[{TT+4*c}:{TT+4*c+3}], v[24:27], {cc}")
        if idx + 4 < 16:
            issue_tile(idx+4)
        elif idx in (12, 13):
            issue_tailw(idx - 12)
    E("  v_add_f32 v14, v14, v15")
    for x in (16, 32):
        bperm_xor(15, 14, 9, 8, x)
        E("  v_add_f32 v14, v14, v15")
    E("  v_lshlrev_b32 v9, 6, v3")
    E("  v_lshl_add_u32 v9, v4, 4, v9")
    E(f"  s_lshl_b32 s84, s{SW}, 11")
    E("  v_add_u32 v9, s84, v9")
    E("  v_lshlrev_b32 v10, 3, v3")
    E(f"  s_lshl_b32 s84, s{SW}, 5")
    E("  v_add_u32 v10, s84, v10")
    E("  v_mov_b32 v13, v14")
    E("  v_cmp_gt_u32 vcc, 4, v3")
    E(f"  s_and_saveexec_b64 s[{EX}:{EX+1}], vcc")
    for c in range(8):
        E(f"  ds_write_b128 v9, v[{ACC+4*c}:{ACC+4*c+3}] offset:{L_RED+c*256}")
    E(f"  ds_write_b64 v10, v[12:13] offset:{L_ML}")
    E(f"  s_mov_b64 exec, s[{EX}:{EX+1}]")
    E("  s_waitcnt lgkmcnt(0)")
    E("  s_barrier")
    E(f"  s_cmp_ge_u32 s{SW}, 2")
    E("  s_cbranch_scc1 L_comb_done")
    E("  v_lshrrev_b32 v10, 5, v0")
    E("  v_bfe_u32 v11, v0, 2, 3")
    E("  v_and_b32 v9, 3, v0")
    E("  v_lshlrev_b32 v9, 4, v9")
    E("  v_lshl_add_u32 v9, v10, 6, v9")
    E("  v_lshl_add_u32 v9, v11, 8, v9")
    for w in range(8):
        E(f"  ds_read_b128 v[{192+4*w}:{192+4*w+3}], v9 offset:{L_RED+w*2048}")
    E("  v_lshlrev_b32 v11, 3, v10")
    for w in range(8):
        E(f"  ds_read_b64 v[{32+2*w}:{33+2*w}], v11 offset:{L_ML+w*32}")
    E("  s_waitcnt lgkmcnt(0)")
    E("  v_max3_f32 v12, v32, v34, v36")
    E("  v_max3_f32 v12, v12, v38, v40")
    E("  v_max3_f32 v12, v12, v42, v44")
    E("  v_max_f32 v12, v12, v46")
    for w in range(8):
        E(f"  v_sub_f32 v{48+w}, v{32+2*w}, v12")
    for w in range(8):
        E(f"  v_mul_f32 v{48+w}, s{SL2E}, v{48+w}")
    for w in range(8):
        E(f"  v_exp_f32 v{48+w}, v{48+w}")
    E("  s_nop 0")
    for r in range(4):
        E(f"  v_mul_f32 v{16+r}, v48, v{192+r}")
    E("  v_mul_f32 v13, v48, v33")
    for w in range(1, 8):
        for r in range(4):
            E(f"  v_fmac_f32 v{16+r}, v{48+w}, v{192+4*w+r}")
        E(f"  v_fmac_f32 v13, v{48+w}, v{33+2*w}")
    E("  v_lshlrev_b32 v9, 4, v0")
    E("  s_lshl_b32 s84, s2, 11")
    E(f"  s_add_u32 s84, s84, 0x{OP:x}")
    E(f"  buffer_store_dwordx4 v[16:19], v9, s[{S_WS}:{S_WS+3}], s84 offen sc1")
    E("  v_and_b32 v9, 31, v0")
    E("  v_cmp_eq_u32 vcc, 0, v9")
    E("  s_lshl_b32 s84, s2, 5")
    E(f"  s_add_u32 s84, s84, 0x{ML:x}")
    E(f"  s_and_saveexec_b64 s[{EX}:{EX+1}], vcc")
    E(f"  buffer_store_dwordx2 v[12:13], v11, s[{S_WS}:{S_WS+3}], s84 offen sc1")
    E(f"  s_mov_b64 exec, s[{EX}:{EX+1}]")
    E("  s_waitcnt vmcnt(0)")
    E("L_comb_done:")
    E("  s_barrier")
    E(f"  s_cmp_lg_u32 s{SW}, 0")
    E("  s_cbranch_scc1 L_noinc")
    E(f"  s_lshl_b32 s89, s{SKVH}, 2")
    E(f"  s_add_u32 s89, s89, {CA}")
    atomic_inc(89)
    E("L_noinc:")
    E(f"  s_cmp_eq_u32 s{SROLE}, 0")
    E("  s_cbranch_scc1 L_end")
    E("  s_waitcnt vmcnt(0)")
    transpose(RING[0], 128)
    transpose(RING[1], 160)
    E("  v_and_b32 v10, 7, v3")
    E(f"  s_cmp_lg_u32 s{SW}, 0")
    E("  s_cbranch_scc1 L_t_wait")
    E(f"  s_cmp_eq_u32 s{SROLE}, 2")
    E("  s_cbranch_scc1 L_t_pollf")
    E(f"  s_lshl_b32 s89, s{SKVH}, 2")
    E(f"  s_add_u32 s89, s89, {CA}")
    poll(89, 32)
    E("  s_branch L_t_wait")
    E("L_t_pollf:")
    E(f"  s_mov_b32 s89, {CF}")
    poll(89, 224)
    E("L_t_wait:")
    E("  s_barrier")
    E(f"  s_cmp_eq_u32 s{SROLE}, 2")
    E("  s_cbranch_scc1 L_t_down")
    E("  v_lshlrev_b32 v11, 16, v10")
    E("  v_lshl_add_u32 v11, v4, 5, v11")
    E(f"  s_lshl_b32 s84, s{SKVH}, 13")
    E(f"  s_lshr_b32 s85, s{SW}, 1")
    E("  s_lshl_b32 s86, s85, 9")
    E("  s_add_u32 s84, s84, s86")
    E(f"  s_and_b32 s86, s{SW}, 1")
    E("  s_lshl_b32 s86, s86, 8")
    E("  s_add_u32 s84, s84, s86")
    E(f"  s_add_u32 s84, s84, 0x{OP:x}")
    for s in range(4):
        for k in range(2):
            r = 64 + 16*s + 8*k
            E(f"  buffer_load_dwordx4 v[{r}:{r+3}], v11, s[{S_WS}:{S_WS+3}], s84 offen offset:{k*128} sc1")
            E(f"  buffer_load_dwordx4 v[{r+4}:{r+7}], v11, s[{S_WS}:{S_WS+3}], s84 offen offset:{k*128+16} sc1")
        if s < 3:
            E("  s_add_u32 s84, s84, 2048")
    E("  v_lshlrev_b32 v11, 10, v10")
    E(f"  s_lshl_b32 s84, s{SKVH}, 7")
    E("  s_lshl_b32 s86, s85, 3")
    E("  s_add_u32 s84, s84, s86")
    E(f"  s_add_u32 s84, s84, 0x{ML:x}")
    for s in range(4):
        E(f"  buffer_load_dwordx2 v[{32+2*s}:{33+2*s}], v11, s[{S_WS}:{S_WS+3}], s84 offen offset:{s*32} sc1")
    E("  s_waitcnt vmcnt(0)")
    E("  v_max3_f32 v12, v32, v34, v36")
    E("  v_max_f32 v12, v12, v38")
    for s in range(4):
        E(f"  v_sub_f32 v{40+s}, v{32+2*s}, v12")
    for s in range(4):
        E(f"  v_mul_f32 v{40+s}, s{SL2E}, v{40+s}")
    for s in range(4):
        E(f"  v_exp_f32 v{40+s}, v{40+s}")
    E("  s_nop 0")
    E("  v_mul_f32 v13, v40, v33")
    for s in range(1, 4):
        E(f"  v_fmac_f32 v13, v{40+s}, v{33+2*s}")
    for j in range(16):
        E(f"  v_mul_f32 v{44+j}, v40, v{64+j}")
    for s in range(1, 4):
        for j in range(16):
            E(f"  v_fmac_f32 v{44+j}, v{40+s}, v{64+16*s+j}")
    E("  v_rcp_f32 v12, v13")
    E("  s_nop 0")
    for j in range(16):
        E(f"  v_mul_f32 v{64+j}, v{44+j}, v12")
    for j in range(16):
        E(f"  v_fma_f32 v{80+j}, -v{64+j}, v13, v{44+j}")
    for j in range(16):
        E(f"  v_fma_f32 v{64+j}, v{80+j}, v12, v{64+j}")
    for i in range(8):
        E(f"  v_cvt_pk_bf16_f32 v{16+i}, v{64+2*i}, v{65+2*i}")
    E("  s_branch L_t_mm")
    E("L_t_down:")
    E("  v_lshlrev_b32 v11, 9, v10")
    E("  v_lshl_add_u32 v11, v4, 5, v11")
    E(f"  s_lshl_b32 s84, s{SKVH}, 1")
    E(f"  s_lshr_b32 s85, s{SW}, 2")
    E("  s_add_u32 s84, s84, s85")
    E("  s_lshl_b32 s84, s84, 12")
    E(f"  s_and_b32 s85, s{SW}, 3")
    E("  s_lshl_b32 s85, s85, 7")
    E("  s_add_u32 s84, s84, s85")
    E(f"  s_add_u32 s84, s84, 0x{FP:x}")
    E(f"  s_add_u32 s85, s84, {14*4096}")
    gregs = [32, 40, 48, 56, 64, 72, 80, 88]
    uregs = [96, 104, 112, 120, 192, 200, 208, 216]
    for kc in range(8):
        g_, u_ = gregs[kc], uregs[kc]
        E(f"  buffer_load_dwordx4 v[{g_}:{g_+3}], v11, s[{S_WS}:{S_WS+3}], s84 offen sc1")
        E(f"  buffer_load_dwordx4 v[{g_+4}:{g_+7}], v11, s[{S_WS}:{S_WS+3}], s84 offen offset:16 sc1")
        E(f"  buffer_load_dwordx4 v[{u_}:{u_+3}], v11, s[{S_WS}:{S_WS+3}], s85 offen sc1")
        E(f"  buffer_load_dwordx4 v[{u_+4}:{u_+7}], v11, s[{S_WS}:{S_WS+3}], s85 offen offset:16 sc1")
        if kc < 7:
            E(f"  s_add_u32 s84, s84, {28*4096}")
            E(f"  s_add_u32 s85, s85, {28*4096}")
    E("  s_waitcnt vmcnt(0)")
    for regs in (gregs, uregs):
        for j in range(8):
            E(f"  v_add_f32 v{regs[0]+j}, v{regs[0]+j}, v{regs[1]+j}")
            E(f"  v_add_f32 v{regs[2]+j}, v{regs[2]+j}, v{regs[3]+j}")
            E(f"  v_add_f32 v{regs[4]+j}, v{regs[4]+j}, v{regs[5]+j}")
            E(f"  v_add_f32 v{regs[6]+j}, v{regs[6]+j}, v{regs[7]+j}")
        for j in range(8):
            E(f"  v_add_f32 v{regs[0]+j}, v{regs[0]+j}, v{regs[2]+j}")
            E(f"  v_add_f32 v{regs[4]+j}, v{regs[4]+j}, v{regs[6]+j}")
        for j in range(8):
            E(f"  v_add_f32 v{regs[0]+j}, v{regs[0]+j}, v{regs[4]+j}")
    for j in range(8):
        E(f"  v_cvt_pk_bf16_f32 v{40+j}, v{32+j}, v{96+j}")
    for j in range(8):
        E(f"  v_lshlrev_b32 v{32+j}, 16, v{40+j}")
        E(f"  v_and_b32 v{96+j}, 0xffff0000, v{40+j}")
    for j in range(8):
        E(f"  v_max_f32 v{32+j}, 0, v{32+j}")
    for j in range(8):
        E(f"  v_mul_f32 v{32+j}, v{32+j}, v{96+j}")
    for i in range(4):
        E(f"  v_cvt_pk_bf16_f32 v{16+i}, v{32+2*i}, v{33+2*i}")
    for i in range(4):
        E(f"  v_mov_b32 v{20+i}, 0")
    E("L_t_mm:")
    E("  s_nop 1")
    for ks in range(2):
        for c in range(8):
            cc = "0" if ks == 0 else f"v[{ACC+4*c}:{ACC+4*c+3}]"
            E(f"  v_mfma_f32_16x16x32_bf16 v[{ACC+4*c}:{ACC+4*c+3}], v[{128+32*ks+4*c}:{128+32*ks+4*c+3}], v[{16+4*ks}:{19+4*ks}], {cc}")
    E("  v_lshlrev_b32 v9, 6, v3")
    E("  v_lshl_add_u32 v9, v4, 4, v9")
    E(f"  s_lshl_b32 s84, s{SW}, 12")
    E("  v_add_u32 v9, s84, v9")
    E("  v_cmp_gt_u32 vcc, 8, v3")
    E(f"  s_and_saveexec_b64 s[{EX}:{EX+1}], vcc")
    E("  s_nop 7")
    for c in range(8):
        E(f"  ds_write_b128 v9, v[{ACC+4*c}:{ACC+4*c+3}] offset:{L_RED+c*512}")
    E(f"  s_mov_b64 exec, s[{EX}:{EX+1}]")
    E("  s_waitcnt lgkmcnt(0)")
    E("  s_barrier")
    E(f"  s_cmp_ge_u32 s{SW}, 4")
    E("  s_cbranch_scc1 L_t_red_done")
    E("  v_lshlrev_b32 v9, 4, v0")
    for w in range(8):
        E(f"  ds_read_b128 v[{64+4*w}:{64+4*w+3}], v9 offset:{L_RED+w*4096}")
    E("  v_lshrrev_b32 v10, 5, v0")
    E("  v_bfe_u32 v11, v0, 2, 3")
    E("  v_and_b32 v12, 3, v0")
    E("  v_lshlrev_b32 v11, 9, v11")
    E("  v_lshl_add_u32 v11, v10, 6, v11")
    E("  v_lshl_add_u32 v11, v12, 4, v11")
    E(f"  s_lshl_b32 s84, s{SRID}, 12")
    E(f"  s_add_u32 s84, s84, 0x{P3:x}")
    E("  s_waitcnt lgkmcnt(0)")
    for r in range(4):
        E(f"  v_add_f32 v{64+r}, v{64+r}, v{68+r}")
        E(f"  v_add_f32 v{72+r}, v{72+r}, v{76+r}")
        E(f"  v_add_f32 v{80+r}, v{80+r}, v{84+r}")
        E(f"  v_add_f32 v{88+r}, v{88+r}, v{92+r}")
    for r in range(4):
        E(f"  v_add_f32 v{64+r}, v{64+r}, v{72+r}")
        E(f"  v_add_f32 v{80+r}, v{80+r}, v{88+r}")
    for r in range(4):
        E(f"  v_add_f32 v{64+r}, v{64+r}, v{80+r}")
    E(f"  buffer_store_dwordx4 v[64:67], v11, s[{S_WS}:{S_WS+3}], s84 offen sc1")
    E("  s_waitcnt vmcnt(0)")
    E("L_t_red_done:")
    E("  s_barrier")
    E(f"  s_cmp_lg_u32 s{SW}, 0")
    E("  s_cbranch_scc1 L_t_cnt_done")
    E(f"  s_lshl_b32 s89, s{SB}, 2")
    E(f"  s_add_u32 s89, s89, {CS}")
    atomic_inc(89, ret=True)
    E("  s_waitcnt vmcnt(0)")
    E("  v_mov_b32 v10, 0")
    E(f"  s_mov_b64 s[{EX}:{EX+1}], exec")
    E("  s_mov_b64 exec, 1")
    E(f"  ds_write_b32 v10, v9 offset:{L_FLAG}")
    E(f"  s_mov_b64 exec, s[{EX}:{EX+1}]")
    E("  s_waitcnt lgkmcnt(0)")
    E("L_t_cnt_done:")
    E("  s_barrier")
    E("  v_mov_b32 v10, 0")
    E(f"  ds_read_b32 v9, v10 offset:{L_FLAG}")
    E("  s_waitcnt lgkmcnt(0)")
    E("  v_readfirstlane_b32 s84, v9")
    E("  s_nop 3")
    E("  s_cmp_lg_u32 s84, 14")
    E("  s_cbranch_scc1 L_end")
    E(f"  s_cmp_ge_u32 s{SW}, 4")
    E("  s_cbranch_scc1 L_end")
    E("  v_lshlrev_b32 v9, 4, v0")
    E(f"  s_lshl_b32 s84, s{SB}, 12")
    E(f"  s_add_u32 s84, s84, 0x{P3:x}")
    for i in range(8):
        E(f"  buffer_load_dwordx4 v[{64+4*i}:{64+4*i+3}], v9, s[{S_WS}:{S_WS+3}], s84 offen sc1")
        E("  s_add_u32 s84, s84, 16384")
    for i in range(7):
        E(f"  buffer_load_dwordx4 v[{96+4*i}:{96+4*i+3}], v9, s[{S_WS}:{S_WS+3}], s84 offen sc1")
        if i < 6:
            E("  s_add_u32 s84, s84, 16384")
    E("  v_lshrrev_b32 v10, 5, v0")
    E("  v_bfe_u32 v11, v0, 2, 3")
    E("  v_and_b32 v12, 3, v0")
    E("  v_lshlrev_b32 v10, 9, v10")
    E("  v_lshl_add_u32 v10, v12, 5, v10")
    E("  v_add_u32 v10, v10, v11")
    E("  v_lshlrev_b32 v10, 1, v10")
    E(f"  s_lshl_b32 s85, s{SB}, 8")
    for r in range(4):
        E(f"  buffer_load_ushort v{16+r}, v10, s[{S_X}:{S_X+3}], s85 offen offset:{r*16}")
    E("  s_waitcnt vmcnt(0)")
    for r in range(4):
        E(f"  v_add_f32 v{64+r}, v{64+r}, v{68+r}")
        E(f"  v_add_f32 v{72+r}, v{72+r}, v{76+r}")
        E(f"  v_add_f32 v{80+r}, v{80+r}, v{84+r}")
        E(f"  v_add_f32 v{88+r}, v{88+r}, v{92+r}")
        E(f"  v_add_f32 v{96+r}, v{96+r}, v{100+r}")
        E(f"  v_add_f32 v{104+r}, v{104+r}, v{108+r}")
        E(f"  v_add_f32 v{112+r}, v{112+r}, v{116+r}")
    for r in range(4):
        E(f"  v_add_f32 v{64+r}, v{64+r}, v{72+r}")
        E(f"  v_add_f32 v{80+r}, v{80+r}, v{88+r}")
        E(f"  v_add_f32 v{96+r}, v{96+r}, v{104+r}")
        E(f"  v_add_f32 v{112+r}, v{112+r}, v{120+r}")
    for r in range(4):
        E(f"  v_add_f32 v{64+r}, v{64+r}, v{80+r}")
        E(f"  v_add_f32 v{96+r}, v{96+r}, v{112+r}")
    for r in range(4):
        E(f"  v_cvt_pk_bf16_f32 v{20+r}, v{64+r}, v{96+r}")
    for r in range(4):
        E(f"  v_lshlrev_b32 v{64+r}, 16, v{20+r}")
        E(f"  v_and_b32 v{96+r}, 0xffff0000, v{20+r}")
    for r in range(4):
        E(f"  v_mul_f32 v{24+r}, 0x{LOG2E ^ 0x80000000:x}, v{96+r}")
    for r in range(4):
        E(f"  v_exp_f32 v{24+r}, v{24+r}")
    E("  s_nop 0")
    for r in range(4):
        E(f"  v_add_f32 v{24+r}, 1.0, v{24+r}")
    for r in range(4):
        E(f"  v_rcp_f32 v{24+r}, v{24+r}")
    E("  s_nop 0")
    for r in range(4):
        E(f"  v_mul_f32 v{24+r}, v{96+r}, v{24+r}")
    for r in range(4):
        E(f"  v_cvt_pk_bf16_f32 v{24+r}, v{24+r}, v{24+r}")
    for r in range(4):
        E(f"  v_lshlrev_b32 v{24+r}, 16, v{24+r}")
    for r in range(4):
        E(f"  v_mul_f32 v{24+r}, v{64+r}, v{24+r}")
    for r in range(4):
        E(f"  v_cvt_pk_bf16_f32 v{24+r}, v{24+r}, v{24+r}")
    for r in range(4):
        E(f"  v_lshlrev_b32 v{24+r}, 16, v{24+r}")
        E(f"  v_lshlrev_b32 v{16+r}, 16, v{16+r}")
    for r in range(4):
        E(f"  v_add_f32 v{24+r}, v{16+r}, v{24+r}")
    for r in range(4):
        E(f"  v_cvt_pk_bf16_f32 v{24+r}, v{24+r}, v{24+r}")
    for r in range(4):
        E(f"  buffer_store_short v{24+r}, v10, s[{S_OUT}:{S_OUT+3}], s85 offen offset:{r*16}")
    E("L_end:")
    E("  s_endpgm")

E(f"; @launch grid=(256,1,1) block=(512,1,1) lds={L_SIZE}")
E('.amdgcn_target "amdgcn-amd-amdhsa--gfx950"')
E(".text")
gen()
E('.section .rodata,"a"')
E(".p2align 6")
E(f".amdhsa_kernel {NAME}_kernel")
E("  .amdhsa_next_free_vgpr 256")
E("  .amdhsa_next_free_sgpr 96")
E("  .amdhsa_accum_offset 256")
E("  .amdhsa_group_segment_fixed_size 0")
E("  .amdhsa_kernarg_size 96")
E("  .amdhsa_user_sgpr_count 2")
E("  .amdhsa_user_sgpr_kernarg_segment_ptr 1")
E("  .amdhsa_system_sgpr_workgroup_id_x 1")
E("  .amdhsa_float_denorm_mode_32 3")
E(".end_amdhsa_kernel")
open(sys.argv[1] if len(sys.argv) > 1 else f"cdna_kernels/{NAME}.s", "w").write("\n".join(out) + "\n")
```

```python
import sys

NAME = "recurrent_scan__gqa_block_cached__glu_gated_reglu__decode"
out = []
def E(s=""):
    out.append(s)

DIAG = len(sys.argv) > 2 and "diag" in sys.argv[2:]

QP = 0x0
FP = 0x100000
OP = 0x200000
ML = 0x280000
P3 = 0x290000
STAMP_BASE = 0x400000
FLQ = 0x380000
FLA = 0x390000
FLS = 0x3a0000
SNON = 91
WS_SIZE = 0x20000000
L_RED = 0
L_ML = 32768
L_Q = 33024
L_O = 34048
L_SIZE = 36096
LOG2E = 0x3FB8AA3B
SCALE = 0x3DB504F3

S_K, S_V, S_WS, S_DBG, S_X, S_W, S_W2, S_OUT = 28, 32, 36, 40, 44, 48, 52, 56
SW, SPAIR, SSPLIT, SB, SKVH = 60, 61, 62, 63, 64
SROLE = 65
ST0, ST1 = 66, 67
SRID = 68
SLO, SHI, SSC, SL2E = 70, 71, 72, 73
SK0, SK1, SV0, SV1 = 74, 75, 76, 77
EX = 80

RING = [64, 96, 128, 160]
TT = 192
ACC = 224
SC = 32
QR = 192
DD = 16
NT = " nt"
SPIN = 100000
NB1 = 2

STREGS = [3, 14, 15, 69, 78, 79, 83, 94, 95, 96, 97, 100, 101]
def stamp(i):
    if not DIAG:
        return
    E("  s_memrealtime s[98:99]")
    E("  s_waitcnt lgkmcnt(0)")
    E(f"  s_mov_b32 s{STREGS[i]}, s98")
def stamp_init():
    if not DIAG:
        return
    for r in STREGS:
        E(f"  s_mov_b32 s{r}, 0")
def stamp_dump():
    if not DIAG:
        return
    E("  s_waitcnt vmcnt(0) lgkmcnt(0)")
    E(f"  s_lshl_b32 s98, s2, 3")
    E(f"  s_add_u32 s98, s98, s{SW}")
    E(f"  s_lshl_b32 s98, s98, 7")
    E(f"  s_add_u32 s98, s98, 0x{STAMP_BASE:x}")
    E("  s_mov_b64 exec, 1")
    E("  v_mov_b32 v1, 0")
    for i, r in enumerate(STREGS):
        E(f"  v_mov_b32 v2, s{r}")
        E(f"  buffer_store_dword v2, v1, s[{S_WS}:{S_WS+3}], s98 offen offset:{i*4}")
        E("  s_waitcnt vmcnt(0)")

def srd(d, ptr, size):
    E(f"  s_mov_b32 s{d}, s{ptr}")
    E(f"  s_mov_b32 s{d+1}, s{ptr+1}")
    E(f"  s_mov_b32 s{d+2}, 0x{size:x}")
    E(f"  s_mov_b32 s{d+3}, 0x00020000")

def transpose(S, T):
    for q in range(4):
        for e in range(2):
            c = 2*q+e
            for p in range(4):
                sel = SLO if e == 0 else SHI
                E(f"  v_perm_b32 v{T+4*c+p}, v{S+4*(2*p+1)+q}, v{S+4*(2*p)+q}, s{sel}")

def bperm_xor(dst, src, addr_tmp, lane4, x):
    E(f"  v_xor_b32 v{addr_tmp}, {x*4}, v{lane4}")
    E(f"  ds_bpermute_b32 v{dst}, v{addr_tmp}, v{src}")
    E("  s_waitcnt lgkmcnt(0)")

def issue_tile(idx):
    b = RING[idx % 4]
    if idx < 8:
        for t in range(2):
            for c in range(4):
                E(f"  buffer_load_dwordx4 v[{b+16*t+4*c}:{b+16*t+4*c+3}], v5, s[{S_K}:{S_K+3}], s{SK0+t} offen offset:{c*64}{NT}")
        E(f"  s_add_u32 s{SK0}, s{SK0}, 8192")
        E(f"  s_add_u32 s{SK1}, s{SK1}, 8192")
    else:
        for i in range(8):
            E(f"  buffer_load_dwordx4 v[{b+4*i}:{b+4*i+3}], v6, s[{S_V}:{S_V+3}], s{SV0+(i>>2)} offen offset:{(i&3)*256}{NT}")
        E(f"  s_add_u32 s{SV0}, s{SV0}, 8192")
        E(f"  s_add_u32 s{SV1}, s{SV1}, 8192")

def issue_tailw(j):
    b = RING[j]
    s = ST0 + j
    for i in range(8):
        E(f"  buffer_load_dwordx4 v[{b+4*i}:{b+4*i+3}], v7, s[{S_W}:{S_W+3}], s{s} offen")
        if i < 7:
            E(f"  s_add_u32 s{s}, s{s}, 8192")

lbl = [0]
def poll_flags(vaddr, active_sgpr_pair):
    lbl[0] += 1
    L = f"L_poll{lbl[0]}"
    E(f"  s_mov_b32 s82, {SPIN}")
    E(f"  buffer_load_dword v8, v{vaddr}, s[{S_WS}:{S_WS+3}], 0 offen sc1")
    E(f"{L}:")
    E("  s_sleep 1")
    E(f"  buffer_load_dword v9, v{vaddr}, s[{S_WS}:{S_WS+3}], 0 offen sc1")
    E("  s_waitcnt vmcnt(1)")
    E(f"  v_cmp_ne_u32 vcc, s{SNON}, v8")
    E(f"  s_and_b64 vcc, vcc, s[{active_sgpr_pair}:{active_sgpr_pair+1}]")
    E(f"  s_cbranch_scc0 {L}_done")
    E("  s_sleep 1")
    E(f"  buffer_load_dword v8, v{vaddr}, s[{S_WS}:{S_WS+3}], 0 offen sc1")
    E("  s_waitcnt vmcnt(1)")
    E(f"  v_cmp_ne_u32 vcc, s{SNON}, v9")
    E(f"  s_and_b64 vcc, vcc, s[{active_sgpr_pair}:{active_sgpr_pair+1}]")
    E(f"  s_cbranch_scc0 {L}_done")
    E("  s_sub_u32 s82, s82, 1")
    E("  s_cmp_eq_u32 s82, 0")
    E(f"  s_cbranch_scc0 {L}")
    E(f"{L}_done:")
    E("  s_waitcnt vmcnt(0)")

def set_flag(base, idx_sgpr):
    E(f"  s_lshl_b32 s89, s{idx_sgpr}, 7")
    E(f"  s_add_u32 s89, s89, 0x{base:x}")
    E("  v_mov_b32 v8, s89")
    E(f"  v_mov_b32 v9, s{SNON}")
    E(f"  s_mov_b64 s[{EX}:{EX+1}], exec")
    E("  s_mov_b64 exec, 1")
    E(f"  buffer_store_dword v9, v8, s[{S_WS}:{S_WS+3}], 0 offen sc1")
    E(f"  s_mov_b64 exec, s[{EX}:{EX+1}]")

def gen():
    K = NAME + "_kernel"
    E(f".globl {K}")
    E(".p2align 8")
    E(f".type {K},@function")
    E(f"{K}:")
    E("  s_cmp_ge_u32 s2, 256")
    E("  s_cbranch_scc1 L_end2")
    E("  s_load_dwordx16 s[4:19], s[0:1], 0")
    E("  s_load_dwordx8 s[20:27], s[0:1], 64")
    E("  v_and_b32 v1, 63, v0")
    E("  v_lshrrev_b32 v2, 6, v0")
    E("  v_and_b32 v3, 15, v1")
    E("  v_lshrrev_b32 v4, 4, v1")
    E(f"  v_readfirstlane_b32 s{SW}, v2")
    E(f"  s_lshr_b32 s{SPAIR}, s2, 2")
    E(f"  s_and_b32 s{SSPLIT}, s2, 3")
    E(f"  s_lshr_b32 s{SB}, s{SPAIR}, 3")
    E(f"  s_and_b32 s{SKVH}, s{SPAIR}, 7")
    E(f"  s_mov_b32 s{SLO}, 0x05040100")
    E(f"  s_mov_b32 s{SHI}, 0x07060302")
    E(f"  s_mov_b32 s{SSC}, 0x{SCALE:x}")
    E(f"  s_mov_b32 s{SL2E}, 0x{LOG2E:x}")
    E("  v_lshlrev_b32 v5, 8, v3")
    E("  v_lshl_add_u32 v5, v4, 4, v5")
    E("  v_lshlrev_b32 v6, 10, v4")
    E("  v_lshl_add_u32 v6, v3, 4, v6")
    E(f"  s_lshl_b32 s{SK0}, s{SPAIR}, 21")
    E(f"  s_lshl_b32 s84, s{SSPLIT}, 19")
    E(f"  s_add_u32 s{SK0}, s{SK0}, s84")
    E(f"  s_lshl_b32 s84, s{SW}, 16")
    E(f"  s_add_u32 s{SK0}, s{SK0}, s84")
    E(f"  s_add_u32 s{SK1}, s{SK0}, 4096")
    E(f"  s_mov_b32 s{SV0}, s{SK0}")
    E(f"  s_mov_b32 s{SV1}, s{SK1}")
    E("  s_waitcnt lgkmcnt(0)")
    srd(S_K, 6, 0x8000000)
    srd(S_V, 8, 0x8000000)
    srd(S_WS, 26, WS_SIZE)
    srd(S_DBG, 24, 256)
    srd(S_X, 4, 8192)
    srd(S_OUT, 22, 8192)
    stamp_init()
    stamp(0)
    E(f"  s_cmp_eq_u32 s{SW}, 0")
    E("  s_cbranch_scc1 L_helper")
    E("  s_barrier")
    for idx in range(NB1):
        issue_tile(idx)
    E("  s_branch L_join")
    E("L_helper:")
    E("  s_cmp_lg_u32 s2, 0")
    E("  s_cbranch_scc1 L_h_nonon")
    E("  s_memrealtime s[98:99]")
    E("  s_waitcnt lgkmcnt(0)")
    E("  s_or_b32 s98, s98, 1")
    E("  v_mov_b32 v8, 0")
    E("  v_mov_b32 v9, s98")
    E(f"  s_mov_b64 s[{EX}:{EX+1}], exec")
    E("  s_mov_b64 exec, 1")
    E(f"  buffer_store_dword v9, v8, s[{S_DBG}:{S_DBG+3}], 0 offen sc1")
    E(f"  s_mov_b64 exec, s[{EX}:{EX+1}]")
    E("L_h_nonon:")
    E("  s_and_b32 s84, s2, 7")
    E("  s_lshr_b32 s85, s2, 3")
    srd(S_W, 10, 512*8192)
    E("  s_cmp_lt_u32 s85, 14")
    E("  s_cselect_b32 s86, s16, s18")
    E("  s_cselect_b32 s87, s17, s19")
    E("  s_cselect_b32 s88, 0, 14")
    E("  s_sub_u32 s88, s85, s88")
    E(f"  s_mov_b32 s{S_W2}, s86")
    E(f"  s_mov_b32 s{S_W2+1}, s87")
    E(f"  s_mov_b32 s{S_W2+2}, 0x{512*3584:x}")
    E(f"  s_mov_b32 s{S_W2+3}, 0x00020000")
    E("  s_cmp_lt_u32 s2, 224")
    E("  s_cbranch_scc1 L_h_guok")
    E(f"  s_mov_b32 s{S_W2+2}, 0")
    E("L_h_guok:")
    E("  v_and_b32 v8, 7, v1")
    E("  v_lshrrev_b32 v9, 3, v1")
    E("  v_lshlrev_b32 v8, 10, v8")
    E("  v_lshl_add_u32 v8, v9, 7, v8")
    for i in range(8):
        E(f"  buffer_load_dwordx4 v[{96+4*i}:{96+4*i+3}], v8, s[{S_X}:{S_X+3}], 0 offen offset:{16*i}")
    E("  v_and_b32 v9, 7, v3")
    E("  v_lshlrev_b32 v9, 10, v9")
    E("  v_lshl_add_u32 v9, v4, 4, v9")
    E("  s_lshl_b32 s89, s84, 7")
    E(f"  buffer_load_dwordx4 v[24:27], v9, s[{S_X}:{S_X+3}], s89 offen")
    E(f"  buffer_load_dwordx4 v[28:31], v9, s[{S_X}:{S_X+3}], s89 offen offset:64")
    E("  v_lshlrev_b32 v10, 16, v4")
    E("  v_lshl_add_u32 v10, v3, 4, v10")
    E("  s_lshl_b32 s89, s84, 19")
    E("  s_lshl_b32 s90, s85, 8")
    E("  s_add_u32 s89, s89, s90")
    for ks in range(2):
        for i in range(8):
            r = 192 + 32*ks + 4*i
            E(f"  buffer_load_dwordx4 v[{r}:{r+3}], v10, s[{S_W}:{S_W+3}], s89 offen")
            E(f"  s_add_u32 s89, s89, {8192 if i < 7 else 8192*25}")
    E("  s_movk_i32 s90, 3584*8")
    E("  v_mul_lo_u32 v11, v4, s90")
    E("  v_lshl_add_u32 v11, v3, 4, v11")
    E("  s_mul_i32 s89, s84, 64*3584")
    E("  s_lshl_b32 s90, s88, 8")
    E("  s_add_u32 s89, s89, s90")
    for ks in range(2):
        for i in range(8):
            r = 32 + 32*ks + 4*i
            E(f"  buffer_load_dwordx4 v[{r}:{r+3}], v11, s[{S_W2}:{S_W2+3}], s89 offen")
            E(f"  s_add_u32 s89, s89, {3584 if i < 7 else 3584*25}")
    E("  s_barrier")
    E("  v_lshlrev_b32 v8, 2, v1")
    E("  s_waitcnt vmcnt(34)")
    for i in range(32):
        E(f"  v_lshlrev_b32 v{128+2*i}, 16, v{96+i}")
        E(f"  v_and_b32 v{129+2*i}, 0xffff0000, v{96+i}")
    for k in range(4):
        E(f"  v_add_f32 v{12+k}, v{128+k}, v{132+k}")
    for i in range(8, 64, 4):
        for k in range(4):
            E(f"  v_add_f32 v{12+k}, v{12+k}, v{128+i+k}")
    E("  v_add_f32 v12, v12, v13")
    E("  v_add_f32 v14, v14, v15")
    E("  v_add_f32 v12, v12, v14")
    for x in (8, 16, 32):
        bperm_xor(13, 12, 9, 8, x)
        E("  v_add_f32 v12, v12, v13")
    E("  v_mul_f32 v12, 0x3b000000, v12")
    for k in range(4):
        E(f"  v_mov_b32 v{96+k}, 0")
    for i in range(0, 64, 4):
        for k in range(4):
            E(f"  v_sub_f32 v{100+k}, v{128+i+k}, v12")
        for k in range(4):
            E(f"  v_fmac_f32 v{96+k}, v{100+k}, v{100+k}")
    E("  v_add_f32 v96, v96, v97")
    E("  v_add_f32 v98, v98, v99")
    E("  v_add_f32 v14, v96, v98")
    for x in (8, 16, 32):
        bperm_xor(13, 14, 9, 8, x)
        E("  v_add_f32 v14, v14, v13")
    E("  v_mul_f32 v14, 0x3b000000, v14")
    E("  v_cvt_pk_bf16_f32 v13, v12, v14")
    E("  v_lshlrev_b32 v12, 16, v13")
    E("  v_and_b32 v14, 0xffff0000, v13")
    E("  v_add_f32 v14, 0x3727c5ac, v14")
    E("  v_cvt_pk_bf16_f32 v13, v14, v14")
    E("  v_lshlrev_b32 v14, 16, v13")
    E("  v_sqrt_f32 v14, v14")
    E("  s_nop 0")
    E("  v_cvt_pk_bf16_f32 v13, v14, v14")
    E("  v_lshlrev_b32 v14, 16, v13")
    E("  v_rcp_f32 v15, v14")
    E("  s_waitcnt vmcnt(32)")
    for i in range(8):
        E(f"  v_lshlrev_b32 v{96+2*i}, 16, v{24+i}")
        E(f"  v_and_b32 v{97+2*i}, 0xffff0000, v{24+i}")
    for i in range(16):
        E(f"  v_sub_f32 v{96+i}, v{96+i}, v12")
    for i in range(8):
        E(f"  v_cvt_pk_bf16_f32 v{24+i}, v{96+2*i}, v{97+2*i}")
    for i in range(8):
        E(f"  v_lshlrev_b32 v{96+2*i}, 16, v{24+i}")
        E(f"  v_and_b32 v{97+2*i}, 0xffff0000, v{24+i}")
    for i in range(16):
        E(f"  v_mul_f32 v{112+i}, v{96+i}, v15")
    for i in range(16):
        E(f"  v_fma_f32 v{128+i}, -v{112+i}, v14, v{96+i}")
    for i in range(16):
        E(f"  v_fma_f32 v{112+i}, v{128+i}, v15, v{112+i}")
    for i in range(8):
        E(f"  v_cvt_pk_bf16_f32 v{16+i}, v{112+2*i}, v{113+2*i}")
    E("  v_lshlrev_b32 v12, 9, v3")
    E("  v_lshl_add_u32 v12, v4, 4, v12")
    E("  v_cmp_gt_u32 vcc, 8, v3")
    E("  s_mov_b64 s[92:93], vcc")
    stamp(1)
    E("  s_waitcnt vmcnt(16)")
    for ks in range(2):
        transpose(192 + 32*ks, 128)
        E("  s_nop 1")
        for c in range(8):
            cc = "0" if ks == 0 else f"v[{160+4*c}:{160+4*c+3}]"
            E(f"  v_mfma_f32_16x16x32_bf16 v[{160+4*c}:{160+4*c+3}], v[{128+4*c}:{128+4*c+3}], v[{16+4*ks}:{19+4*ks}], {cc}")
    E("  s_lshl_b32 s89, s84, 5")
    E("  s_add_u32 s89, s89, s85")
    E("  s_lshl_b32 s89, s89, 12")
    E(f"  s_mov_b64 s[{EX}:{EX+1}], exec")
    E("  s_mov_b64 exec, s[92:93]")
    E("  s_nop 4")
    for c in range(8):
        E(f"  buffer_store_dwordx4 v[{160+4*c}:{160+4*c+3}], v12, s[{S_WS}:{S_WS+3}], s89 offen offset:{c*64} sc1")
    E(f"  s_mov_b64 exec, s[{EX}:{EX+1}]")
    E("  s_cmp_ge_u32 s2, 224")
    E("  s_cbranch_scc1 L_h_nogu")
    E("  s_waitcnt vmcnt(8)")
    for ks in range(2):
        transpose(32 + 32*ks, 128)
        E("  s_nop 1")
        for c in range(8):
            cc = "0" if ks == 0 else f"v[{192+4*c}:{192+4*c+3}]"
            E(f"  v_mfma_f32_16x16x32_bf16 v[{192+4*c}:{192+4*c+3}], v[{128+4*c}:{128+4*c+3}], v[{16+4*ks}:{19+4*ks}], {cc}")
    E("  s_mul_i32 s89, s84, 28")
    E("  s_add_u32 s89, s89, s85")
    E("  s_lshl_b32 s89, s89, 12")
    E(f"  s_add_u32 s89, s89, 0x{FP:x}")
    E(f"  s_mov_b64 s[{EX}:{EX+1}], exec")
    E("  s_mov_b64 exec, s[92:93]")
    E("  s_nop 4")
    for c in range(8):
        E(f"  buffer_store_dwordx4 v[{192+4*c}:{192+4*c+3}], v12, s[{S_WS}:{S_WS+3}], s89 offen offset:{c*64} sc1")
    E(f"  s_mov_b64 exec, s[{EX}:{EX+1}]")
    E("L_h_nogu:")
    stamp(2)
    E("  v_mov_b32 v8, 0")
    E(f"  s_mov_b32 s82, {SPIN}")
    E("L_h_non:")
    E(f"  buffer_load_dword v9, v8, s[{S_DBG}:{S_DBG+3}], 0 offen sc1")
    E("  s_waitcnt vmcnt(0)")
    E(f"  v_readfirstlane_b32 s{SNON}, v9")
    E("  s_nop 3")
    E(f"  s_cmp_lg_u32 s{SNON}, 0")
    E("  s_cbranch_scc1 L_h_non_done")
    E("  s_sleep 1")
    E("  s_sub_u32 s82, s82, 1")
    E("  s_cmp_eq_u32 s82, 0")
    E("  s_cbranch_scc0 L_h_non")
    E("L_h_non_done:")
    set_flag(FLQ, 2)
    stamp(3)
    E("  v_and_b32 v11, 31, v1")
    E(f"  s_lshl_b32 s89, s{SKVH}, 5")
    E("  v_add_u32 v11, s89, v11")
    E("  v_lshlrev_b32 v11, 7, v11")
    E(f"  v_add_u32 v11, 0x{FLQ:x}, v11")
    E("  s_mov_b64 s[92:93], exec")
    poll_flags(11, 92)
    stamp(4)
    E("  v_lshrrev_b32 v10, 5, v1")
    E("  v_and_b32 v11, 31, v1")
    E("  v_lshlrev_b32 v12, 12, v10")
    E("  v_lshl_add_u32 v12, v11, 4, v12")
    E(f"  s_lshl_b32 s89, s{SKVH}, 14")
    E(f"  s_lshl_b32 s90, s{SB}, 9")
    E("  s_add_u32 s89, s89, s90")
    E("  s_add_u32 s90, s89, 8192")
    for kc in range(8):
        E(f"  buffer_load_dwordx4 v[{64+4*kc}:{64+4*kc+3}], v12, s[{S_WS}:{S_WS+3}], s89 offen sc1")
        E(f"  buffer_load_dwordx4 v[{96+4*kc}:{96+4*kc+3}], v12, s[{S_WS}:{S_WS+3}], s90 offen sc1")
        if kc < 7:
            E("  s_add_u32 s89, s89, 131072")
            E("  s_add_u32 s90, s90, 131072")
    E("  v_and_b32 v13, 3, v11")
    E("  v_lshrrev_b32 v14, 2, v11")
    E("  v_lshlrev_b32 v13, 5, v13")
    E("  v_add_u32 v13, v13, v14")
    E("  v_lshl_add_u32 v13, v10, 7, v13")
    E("  v_lshlrev_b32 v13, 1, v13")
    E("  s_waitcnt vmcnt(0)")
    for half in range(2):
        b0 = 64 + 32*half
        for r in range(4):
            E(f"  v_add_f32 v{b0+r}, v{b0+r}, v{b0+4+r}")
            E(f"  v_add_f32 v{b0+8+r}, v{b0+8+r}, v{b0+12+r}")
            E(f"  v_add_f32 v{b0+16+r}, v{b0+16+r}, v{b0+20+r}")
            E(f"  v_add_f32 v{b0+24+r}, v{b0+24+r}, v{b0+28+r}")
        for r in range(4):
            E(f"  v_add_f32 v{b0+r}, v{b0+r}, v{b0+8+r}")
            E(f"  v_add_f32 v{b0+16+r}, v{b0+16+r}, v{b0+24+r}")
        for r in range(4):
            E(f"  v_add_f32 v{b0+r}, v{b0+r}, v{b0+16+r}")
        E(f"  v_cvt_pk_bf16_f32 v{b0+4}, v{b0}, v{b0+1}")
        E(f"  v_cvt_pk_bf16_f32 v{b0+5}, v{b0+2}, v{b0+3}")
        E(f"  ds_write_b16 v13, v{b0+4} offset:{L_Q+half*512}")
        E(f"  ds_write_b16_d16_hi v13, v{b0+4} offset:{L_Q+half*512+16}")
        E(f"  ds_write_b16 v13, v{b0+5} offset:{L_Q+half*512+32}")
        E(f"  ds_write_b16_d16_hi v13, v{b0+5} offset:{L_Q+half*512+48}")
    E("  s_waitcnt lgkmcnt(0)")
    for idx in range(NB1):
        issue_tile(idx)
    E("L_join:")
    E(f"  s_mov_b32 s{SROLE}, 0")
    E(f"  s_mov_b32 s{ST0}, 0")
    E(f"  s_mov_b32 s{ST1}, 0")
    E(f"  s_lshr_b32 s{SRID}, s2, 3")
    E("  s_and_b32 s84, s2, 7")
    E(f"  s_sub_u32 s85, s84, s{SRID}")
    E("  s_and_b32 s85, s85, 7")
    srd(S_W, 12, 4096*1024)
    E("  s_cmp_eq_u32 s85, 0")
    E("  s_cbranch_scc1 L_role_wo")
    E("  s_cmp_eq_u32 s85, 5")
    E("  s_cbranch_scc1 L_role_fin")
    E("  s_cmp_lg_u32 s85, 3")
    E("  s_cbranch_scc1 L_norole")
    E(f"  s_cmp_ge_u32 s{SRID}, 14")
    E("  s_cbranch_scc1 L_norole")
    srd(S_W, 20, 1792*1024)
    E(f"  s_mov_b32 s{SROLE}, 2")
    E("  s_branch L_role_w")
    E("L_role_wo:")
    E(f"  s_mov_b32 s{SROLE}, 1")
    E("L_role_w:")
    E(f"  s_lshl_b32 s84, s{SRID}, 7")
    E(f"  s_and_b32 s85, s{SW}, 1")
    E("  s_lshl_b32 s85, s85, 2")
    E("  s_add_u32 s84, s84, s85")
    E("  s_lshl_b32 s84, s84, 10")
    E(f"  s_lshr_b32 s85, s{SW}, 1")
    E("  s_lshl_b32 s85, s85, 8")
    E(f"  s_add_u32 s{ST0}, s84, s85")
    E(f"  s_add_u32 s{ST1}, s{ST0}, 2048")
    E("  s_branch L_roledone")
    E("L_role_fin:")
    E(f"  s_mov_b32 s{SROLE}, 3")
    E("L_norole:")
    E(f"  s_mov_b32 s{S_W+2}, 0")
    E("L_roledone:")
    E("  v_and_b32 v7, 1, v4")
    E("  v_lshlrev_b32 v7, 6, v7")
    E("  v_lshrrev_b32 v8, 1, v4")
    E("  v_add_u32 v7, v7, v8")
    E("  v_lshlrev_b32 v7, 10, v7")
    E("  v_lshl_add_u32 v7, v3, 4, v7")
    E("  s_barrier")
    stamp(5)
    for idx in range(NB1, 4):
        issue_tile(idx)
    E("  v_lshlrev_b32 v9, 8, v3")
    E("  v_lshl_add_u32 v9, v4, 4, v9")
    for c in range(4):
        for k in range(4):
            E(f"  v_mov_b32 v{QR+4*c+k}, 0")
    E("  v_cmp_gt_u32 vcc, 4, v3")
    E(f"  s_and_saveexec_b64 s[{EX}:{EX+1}], vcc")
    for c in range(4):
        E(f"  ds_read_b128 v[{QR+4*c}:{QR+4*c+3}], v9 offset:{L_Q+c*64}")
    E(f"  s_mov_b64 exec, s[{EX}:{EX+1}]")
    E("  v_mov_b32 v12, 0xff800000")
    E("  s_waitcnt lgkmcnt(0)")
    for idx in range(8):
        b = RING[idx % 4]
        E("  s_waitcnt vmcnt(24)")
        for t in range(2):
            for c in range(4):
                cc = "0" if c == 0 else f"v[{DD+4*t}:{DD+4*t+3}]"
                E(f"  v_mfma_f32_16x16x32_bf16 v[{DD+4*t}:{DD+4*t+3}], v[{b+16*t+4*c}:{b+16*t+4*c+3}], v[{QR+4*c}:{QR+4*c+3}], {cc}")
        issue_tile(idx+4)
        E("  s_nop 1")
        for p in range(4):
            E(f"  v_cvt_pk_bf16_f32 v{24+p}, v{DD+2*p}, v{DD+2*p+1}")
        for p in range(4):
            E(f"  v_lshlrev_b32 v{DD+2*p}, 16, v{24+p}")
            E(f"  v_and_b32 v{DD+2*p+1}, 0xffff0000, v{24+p}")
        for k in range(8):
            E(f"  v_mul_f32 v{DD+k}, s{SSC}, v{DD+k}")
        for p in range(4):
            E(f"  v_cvt_pk_bf16_f32 v{SC+4*idx+p}, v{DD+2*p}, v{DD+2*p+1}")
        for p in range(4):
            E(f"  v_max3_f32 v12, v{DD+2*p}, v{DD+2*p+1}, v12")
    E("  v_lshlrev_b32 v8, 2, v1")
    for x in (16, 32):
        bperm_xor(13, 12, 9, 8, x)
        E("  v_max_f32 v12, v12, v13")
    E("  v_cvt_pk_bf16_f32 v13, v12, v12")
    E("  v_lshlrev_b32 v12, 16, v13")
    E(f"  v_mul_f32 v13, s{SL2E}, v12")
    E("  v_mov_b32 v14, 0")
    E("  v_mov_b32 v15, 0")
    stamp(6)
    for idx in range(8, 16):
        j = idx - 8
        b = RING[idx % 4]
        E(f"  ; ---- V tile {j}")
        for p in range(4):
            E(f"  v_lshlrev_b32 v{DD+2*p}, 16, v{SC+4*j+p}")
            E(f"  v_and_b32 v{DD+2*p+1}, 0xffff0000, v{SC+4*j+p}")
        for k in range(8):
            E(f"  v_fma_f32 v{DD+k}, v{DD+k}, s{SL2E}, -v13")
        for k in range(8):
            E(f"  v_exp_f32 v{DD+k}, v{DD+k}")
        E("  s_nop 0")
        for p in range(4):
            E(f"  v_cvt_pk_bf16_f32 v{24+p}, v{DD+2*p}, v{DD+2*p+1}")
        for p in range(4):
            E(f"  v_add_f32 v14, v14, v{DD+2*p}")
            E(f"  v_add_f32 v15, v15, v{DD+2*p+1}")
        n_tiles = min(3, 15 - idx)
        n_tw = max(0, min(2, idx - 12))
        E(f"  s_waitcnt vmcnt({(n_tiles + n_tw) * 8})")
        transpose(b, TT)
        E("  s_nop 1")
        for c in range(8):
            cc = "0" if j == 0 else f"v[{ACC+4*c}:{ACC+4*c+3}]"
            E(f"  v_mfma_f32_16x16x32_bf16 v[{ACC+4*c}:{ACC+4*c+3}], v[{TT+4*c}:{TT+4*c+3}], v[24:27], {cc}")
        if idx + 4 < 16:
            issue_tile(idx+4)
        elif idx in (12, 13):
            issue_tailw(idx - 12)
    stamp(7)
    E("  v_add_f32 v14, v14, v15")
    for x in (16, 32):
        bperm_xor(15, 14, 9, 8, x)
        E("  v_add_f32 v14, v14, v15")
    E("  v_lshlrev_b32 v9, 6, v3")
    E("  v_lshl_add_u32 v9, v4, 4, v9")
    E(f"  s_lshl_b32 s84, s{SW}, 11")
    E("  v_add_u32 v9, s84, v9")
    E("  v_lshlrev_b32 v10, 3, v3")
    E(f"  s_lshl_b32 s84, s{SW}, 5")
    E("  v_add_u32 v10, s84, v10")
    E("  v_mov_b32 v13, v14")
    E("  v_cmp_gt_u32 vcc, 4, v3")
    E(f"  s_and_saveexec_b64 s[{EX}:{EX+1}], vcc")
    for c in range(8):
        E(f"  ds_write_b128 v9, v[{ACC+4*c}:{ACC+4*c+3}] offset:{L_RED+c*256}")
    E(f"  ds_write_b64 v10, v[12:13] offset:{L_ML}")
    E(f"  s_mov_b64 exec, s[{EX}:{EX+1}]")
    E("  s_waitcnt lgkmcnt(0)")
    E("  s_barrier")
    E(f"  s_cmp_ge_u32 s{SW}, 2")
    E("  s_cbranch_scc1 L_comb_done")
    E("  v_lshrrev_b32 v10, 5, v0")
    E("  v_bfe_u32 v11, v0, 2, 3")
    E("  v_and_b32 v9, 3, v0")
    E("  v_lshlrev_b32 v9, 4, v9")
    E("  v_lshl_add_u32 v9, v10, 6, v9")
    E("  v_lshl_add_u32 v9, v11, 8, v9")
    for w in range(8):
        E(f"  ds_read_b128 v[{192+4*w}:{192+4*w+3}], v9 offset:{L_RED+w*2048}")
    E("  v_lshlrev_b32 v11, 3, v10")
    for w in range(8):
        E(f"  ds_read_b64 v[{32+2*w}:{33+2*w}], v11 offset:{L_ML+w*32}")
    E("  s_waitcnt lgkmcnt(0)")
    E("  v_max3_f32 v12, v32, v34, v36")
    E("  v_max3_f32 v12, v12, v38, v40")
    E("  v_max3_f32 v12, v12, v42, v44")
    E("  v_max_f32 v12, v12, v46")
    for w in range(8):
        E(f"  v_sub_f32 v{48+w}, v{32+2*w}, v12")
    for w in range(8):
        E(f"  v_mul_f32 v{48+w}, s{SL2E}, v{48+w}")
    for w in range(8):
        E(f"  v_exp_f32 v{48+w}, v{48+w}")
    E("  s_nop 0")
    for r in range(4):
        E(f"  v_mul_f32 v{16+r}, v48, v{192+r}")
    E("  v_mul_f32 v13, v48, v33")
    for w in range(1, 8):
        for r in range(4):
            E(f"  v_fmac_f32 v{16+r}, v{48+w}, v{192+4*w+r}")
        E(f"  v_fmac_f32 v13, v{48+w}, v{33+2*w}")
    E("  v_lshlrev_b32 v9, 4, v0")
    E("  s_lshl_b32 s84, s2, 11")
    E(f"  s_add_u32 s84, s84, 0x{OP:x}")
    E(f"  buffer_store_dwordx4 v[16:19], v9, s[{S_WS}:{S_WS+3}], s84 offen sc1")
    E("  v_and_b32 v9, 31, v0")
    E("  v_cmp_eq_u32 vcc, 0, v9")
    E("  s_lshl_b32 s84, s2, 5")
    E(f"  s_add_u32 s84, s84, 0x{ML:x}")
    E(f"  s_and_saveexec_b64 s[{EX}:{EX+1}], vcc")
    E(f"  buffer_store_dwordx2 v[12:13], v11, s[{S_WS}:{S_WS+3}], s84 offen sc1")
    E(f"  s_mov_b64 exec, s[{EX}:{EX+1}]")
    E("  s_waitcnt vmcnt(0)")
    E("L_comb_done:")
    E("  s_barrier")
    E(f"  s_cmp_lg_u32 s{SW}, 0")
    E("  s_cbranch_scc1 L_noflag")
    set_flag(FLA, 2)
    E("L_noflag:")
    stamp(8)
    E(f"  s_cmp_eq_u32 s{SROLE}, 0")
    E("  s_cbranch_scc1 L_end")
    E(f"  s_cmp_eq_u32 s{SROLE}, 3")
    E("  s_cbranch_scc1 L_final")
    E("  s_waitcnt vmcnt(0)")
    transpose(RING[0], 128)
    transpose(RING[1], 160)
    E(f"  s_cmp_lg_u32 s{SW}, 0")
    E("  s_cbranch_scc1 L_t_wait")
    E(f"  s_cmp_eq_u32 s{SROLE}, 2")
    E("  s_cbranch_scc1 L_t_pollf")
    E("  v_bfe_u32 v11, v1, 2, 3")
    E("  v_lshlrev_b32 v11, 5, v11")
    E("  v_and_b32 v12, 3, v1")
    E("  v_add_u32 v11, v11, v12")
    E(f"  s_lshr_b32 s89, s{SRID}, 2")
    E("  s_lshl_b32 s89, s89, 2")
    E("  v_add_u32 v11, s89, v11")
    E("  v_lshlrev_b32 v11, 7, v11")
    E(f"  v_add_u32 v11, 0x{FLA:x}, v11")
    E("  s_mov_b64 s[92:93], exec")
    poll_flags(11, 92)
    E("  s_branch L_t_wait")
    E("L_t_pollf:")
    E("  v_lshlrev_b32 v11, 7, v1")
    E(f"  v_add_u32 v11, 0x{FLQ:x}, v11")
    E("  s_mov_b64 s[92:93], exec")
    for j in range(4):
        if j == 3:
            E("  s_mov_b32 s93, 0")
        poll_flags(11, 92)
        if j < 3:
            E(f"  v_add_u32 v11, {64*128}, v11")
    E("L_t_wait:")
    E("  s_barrier")
    stamp(9)
    E(f"  s_cmp_ge_u32 s{SW}, 4")
    E("  s_cbranch_scc1 L_t_bdone")
    E("  v_lshrrev_b32 v10, 5, v0")
    E("  v_and_b32 v11, 31, v0")
    E(f"  s_cmp_eq_u32 s{SROLE}, 2")
    E("  s_cbranch_scc1 L_t_down")
    E("  v_lshlrev_b32 v12, 16, v10")
    E("  v_lshl_add_u32 v12, v11, 4, v12")
    E(f"  s_lshr_b32 s84, s{SRID}, 2")
    E(f"  s_and_b32 s85, s{SRID}, 3")
    E("  s_lshl_b32 s86, s84, 13")
    E("  s_lshl_b32 s87, s85, 9")
    E("  s_add_u32 s86, s86, s87")
    E(f"  s_add_u32 s86, s86, 0x{OP:x}")
    for s in range(4):
        E(f"  buffer_load_dwordx4 v[{64+4*s}:{64+4*s+3}], v12, s[{S_WS}:{S_WS+3}], s86 offen offset:{s*2048} sc1") if s < 2 else None
    E("  s_add_u32 s86, s86, 4096")
    for s in range(2, 4):
        E(f"  buffer_load_dwordx4 v[{64+4*s}:{64+4*s+3}], v12, s[{S_WS}:{S_WS+3}], s86 offen offset:{(s-2)*2048} sc1")
    E("  v_lshlrev_b32 v12, 10, v10")
    E("  s_lshl_b32 s86, s84, 7")
    E("  s_lshl_b32 s87, s85, 3")
    E("  s_add_u32 s86, s86, s87")
    E(f"  s_add_u32 s86, s86, 0x{ML:x}")
    for s in range(4):
        E(f"  buffer_load_dwordx2 v[{32+2*s}:{33+2*s}], v12, s[{S_WS}:{S_WS+3}], s86 offen offset:{s*32} sc1")
    E("  s_waitcnt vmcnt(0)")
    E("  v_max3_f32 v12, v32, v34, v36")
    E("  v_max_f32 v12, v12, v38")
    for s in range(4):
        E(f"  v_sub_f32 v{40+s}, v{32+2*s}, v12")
    for s in range(4):
        E(f"  v_mul_f32 v{40+s}, s{SL2E}, v{40+s}")
    for s in range(4):
        E(f"  v_exp_f32 v{40+s}, v{40+s}")
    E("  s_nop 0")
    E("  v_mul_f32 v13, v40, v33")
    for s in range(1, 4):
        E(f"  v_fmac_f32 v13, v{40+s}, v{33+2*s}")
    for j in range(4):
        E(f"  v_mul_f32 v{44+j}, v40, v{64+j}")
    for s in range(1, 4):
        for j in range(4):
            E(f"  v_fmac_f32 v{44+j}, v{40+s}, v{64+4*s+j}")
    E("  v_rcp_f32 v12, v13")
    E("  s_nop 0")
    for j in range(4):
        E(f"  v_mul_f32 v{64+j}, v{44+j}, v12")
    for j in range(4):
        E(f"  v_fma_f32 v{80+j}, -v{64+j}, v13, v{44+j}")
    for j in range(4):
        E(f"  v_fma_f32 v{64+j}, v{80+j}, v12, v{64+j}")
    E("  v_cvt_pk_bf16_f32 v16, v64, v65")
    E("  v_cvt_pk_bf16_f32 v17, v66, v67")
    E("  s_branch L_t_bst")
    E("L_t_down:")
    E("  v_lshlrev_b32 v12, 9, v10")
    E("  v_lshl_add_u32 v12, v11, 4, v12")
    E(f"  s_lshl_b32 s84, s{SRID}, 12")
    E(f"  s_add_u32 s84, s84, 0x{FP:x}")
    E(f"  s_add_u32 s85, s84, {14*4096}")
    for kc in range(8):
        E(f"  buffer_load_dwordx4 v[{32+4*kc}:{32+4*kc+3}], v12, s[{S_WS}:{S_WS+3}], s84 offen sc1")
        E(f"  buffer_load_dwordx4 v[{64+4*kc}:{64+4*kc+3}], v12, s[{S_WS}:{S_WS+3}], s85 offen sc1")
        if kc < 7:
            E(f"  s_add_u32 s84, s84, {28*4096}")
            E(f"  s_add_u32 s85, s85, {28*4096}")
    E("  s_waitcnt vmcnt(0)")
    for b0 in (32, 64):
        for r in range(4):
            E(f"  v_add_f32 v{b0+r}, v{b0+r}, v{b0+4+r}")
            E(f"  v_add_f32 v{b0+8+r}, v{b0+8+r}, v{b0+12+r}")
            E(f"  v_add_f32 v{b0+16+r}, v{b0+16+r}, v{b0+20+r}")
            E(f"  v_add_f32 v{b0+24+r}, v{b0+24+r}, v{b0+28+r}")
        for r in range(4):
            E(f"  v_add_f32 v{b0+r}, v{b0+r}, v{b0+8+r}")
            E(f"  v_add_f32 v{b0+16+r}, v{b0+16+r}, v{b0+24+r}")
        for r in range(4):
            E(f"  v_add_f32 v{b0+r}, v{b0+r}, v{b0+16+r}")
    for j in range(4):
        E(f"  v_cvt_pk_bf16_f32 v{40+j}, v{32+j}, v{64+j}")
    for j in range(4):
        E(f"  v_lshlrev_b32 v{32+j}, 16, v{40+j}")
        E(f"  v_and_b32 v{64+j}, 0xffff0000, v{40+j}")
    for j in range(4):
        E(f"  v_max_f32 v{32+j}, 0, v{32+j}")
    for j in range(4):
        E(f"  v_mul_f32 v{32+j}, v{32+j}, v{64+j}")
    E("  v_cvt_pk_bf16_f32 v16, v32, v33")
    E("  v_cvt_pk_bf16_f32 v17, v34, v35")
    E("L_t_bst:")
    E("  v_lshlrev_b32 v12, 3, v0")
    E(f"  ds_write_b64 v12, v[16:17] offset:{L_O}")
    E("  s_waitcnt lgkmcnt(0)")
    E("L_t_bdone:")
    E("  s_barrier")
    E("  v_and_b32 v10, 7, v3")
    E("  v_lshlrev_b32 v10, 8, v10")
    E("  v_lshl_add_u32 v10, v4, 4, v10")
    E(f"  s_and_b32 s84, s{SW}, 1")
    E("  s_lshl_b32 s84, s84, 7")
    E("  v_add_u32 v10, s84, v10")
    E(f"  ds_read_b128 v[16:19], v10 offset:{L_O}")
    E(f"  ds_read_b128 v[20:23], v10 offset:{L_O+64}")
    E("  s_waitcnt lgkmcnt(0)")
    for ks in range(2):
        for c in range(8):
            cc = "0" if ks == 0 else f"v[{ACC+4*c}:{ACC+4*c+3}]"
            E(f"  v_mfma_f32_16x16x32_bf16 v[{ACC+4*c}:{ACC+4*c+3}], v[{128+32*ks+4*c}:{128+32*ks+4*c+3}], v[{16+4*ks}:{19+4*ks}], {cc}")
    E("  v_lshlrev_b32 v9, 6, v3")
    E("  v_lshl_add_u32 v9, v4, 4, v9")
    E(f"  s_lshl_b32 s84, s{SW}, 12")
    E("  v_add_u32 v9, s84, v9")
    E("  v_cmp_gt_u32 vcc, 8, v3")
    E(f"  s_and_saveexec_b64 s[{EX}:{EX+1}], vcc")
    E("  s_nop 7")
    for c in range(8):
        E(f"  ds_write_b128 v9, v[{ACC+4*c}:{ACC+4*c+3}] offset:{L_RED+c*512}")
    E(f"  s_mov_b64 exec, s[{EX}:{EX+1}]")
    E("  s_waitcnt lgkmcnt(0)")
    E("  s_barrier")
    E("  v_and_b32 v9, 255, v0")
    E("  v_lshlrev_b32 v9, 4, v9")
    E("  v_lshrrev_b32 v13, 8, v0")
    E("  v_lshl_add_u32 v9, v13, 14, v9")
    for k in range(4):
        E(f"  ds_read_b128 v[{64+4*k}:{64+4*k+3}], v9 offset:{L_RED+k*4096}")
    E("  v_bfe_u32 v10, v0, 5, 3")
    E("  v_bfe_u32 v11, v0, 2, 3")
    E("  v_and_b32 v12, 3, v0")
    E("  v_lshlrev_b32 v11, 11, v11")
    E("  v_lshl_add_u32 v11, v10, 6, v11")
    E("  v_lshl_add_u32 v11, v12, 4, v11")
    E("  v_lshl_add_u32 v11, v13, 10, v11")
    E(f"  s_mov_b32 s84, s{SRID}")
    E(f"  s_cmp_eq_u32 s{SROLE}, 2")
    E("  s_cselect_b32 s85, 32, 0")
    E("  s_add_u32 s84, s84, s85")
    E("  s_lshl_b32 s84, s84, 14")
    E(f"  s_add_u32 s84, s84, 0x{P3:x}")
    E("  s_waitcnt lgkmcnt(0)")
    for r in range(4):
        E(f"  v_add_f32 v{64+r}, v{64+r}, v{68+r}")
        E(f"  v_add_f32 v{72+r}, v{72+r}, v{76+r}")
    E(f"  buffer_store_dwordx4 v[64:67], v11, s[{S_WS}:{S_WS+3}], s84 offen sc1")
    E(f"  buffer_store_dwordx4 v[72:75], v11, s[{S_WS}:{S_WS+3}], s84 offen offset:512 sc1")
    E("  s_waitcnt vmcnt(0)")
    E("  s_barrier")
    E(f"  s_cmp_lg_u32 s{SW}, 0")
    E("  s_cbranch_scc1 L_end")
    E(f"  s_mov_b32 s90, s{SRID}")
    E(f"  s_cmp_eq_u32 s{SROLE}, 2")
    E("  s_cselect_b32 s85, 32, 0")
    E("  s_add_u32 s90, s90, s85")
    set_flag(FLS, 90)
    stamp(10)
    E("  s_branch L_end")
    E("L_final:")
    E(f"  s_cmp_lg_u32 s{SW}, 0")
    E("  s_cbranch_scc1 L_f_wait")
    E("  v_lshlrev_b32 v11, 7, v1")
    E(f"  v_add_u32 v11, 0x{FLS:x}, v11")
    E("  s_mov_b32 s92, 0xffffffff")
    E("  s_mov_b32 s93, 0x00003fff")
    poll_flags(11, 92)
    E("L_f_wait:")
    E("  s_barrier")
    stamp(10)
    E("  v_lshrrev_b32 v10, 5, v0")
    E("  v_and_b32 v11, 31, v0")
    E("  v_lshlrev_b32 v12, 14, v10")
    E("  v_lshl_add_u32 v12, v11, 4, v12")
    E(f"  s_lshl_b32 s84, s{SRID}, 9")
    E(f"  s_add_u32 s84, s84, 0x{P3:x}")
    E(f"  buffer_load_dwordx4 v[64:67], v12, s[{S_WS}:{S_WS+3}], s84 offen sc1")
    E(f"  s_add_u32 s85, s84, {16*16384}")
    E(f"  buffer_load_dwordx4 v[68:71], v12, s[{S_WS}:{S_WS+3}], s85 offen sc1")
    E(f"  s_add_u32 s85, s84, {32*16384}")
    for r in range(4):
        E(f"  v_mov_b32 v{72+r}, 0")
    E("  v_cmp_gt_u32 vcc, 14, v10")
    E(f"  s_and_saveexec_b64 s[{EX}:{EX+1}], vcc")
    E(f"  buffer_load_dwordx4 v[72:75], v12, s[{S_WS}:{S_WS+3}], s85 offen sc1")
    E(f"  s_mov_b64 exec, s[{EX}:{EX+1}]")
    E("  v_lshrrev_b32 v13, 2, v11")
    E("  v_and_b32 v14, 3, v11")
    E("  v_lshl_add_u32 v13, v14, 5, v13")
    E("  v_lshlrev_b32 v13, 1, v13")
    E(f"  s_lshl_b32 s86, s{SRID}, 8")
    for r in range(4):
        E(f"  buffer_load_ushort v{16+r}, v13, s[{S_X}:{S_X+3}], s86 offen offset:{r*16}")
    E("  s_waitcnt vmcnt(0)")
    for r in range(4):
        E(f"  v_add_f32 v{64+r}, v{64+r}, v{68+r}")
    E("  v_lshlrev_b32 v9, 4, v0")
    E(f"  ds_write_b128 v9, v[64:67] offset:{L_RED}")
    E(f"  ds_write_b128 v9, v[72:75] offset:{L_RED+8192}")
    E("  s_waitcnt lgkmcnt(0)")
    E("  s_barrier")
    E(f"  s_cmp_lg_u32 s{SW}, 0")
    E("  s_cbranch_scc1 L_end")
    E("  v_lshrrev_b32 v9, 5, v1")
    E("  v_lshlrev_b32 v9, 13, v9")
    E("  v_lshl_add_u32 v9, v11, 4, v9")
    for k in range(16):
        E(f"  ds_read_b128 v[{64+4*k}:{64+4*k+3}], v9 offset:{L_RED+k*512}")
    E("  s_waitcnt lgkmcnt(0)")
    for st in (1, 2, 4, 8):
        for k in range(0, 16, 2*st):
            for r in range(4):
                E(f"  v_add_f32 v{64+4*k+r}, v{64+4*k+r}, v{64+4*(k+st)+r}")
    E("  v_lshlrev_b32 v8, 2, v1")
    E("  v_xor_b32 v8, 128, v8")
    for r in range(4):
        E(f"  ds_bpermute_b32 v{96+r}, v8, v{64+r}")
    E("  s_waitcnt lgkmcnt(0)")
    for r in range(4):
        E(f"  v_cvt_pk_bf16_f32 v{20+r}, v{64+r}, v{96+r}")
    for r in range(4):
        E(f"  v_lshlrev_b32 v{64+r}, 16, v{20+r}")
        E(f"  v_and_b32 v{96+r}, 0xffff0000, v{20+r}")
    for r in range(4):
        E(f"  v_mul_f32 v{24+r}, 0x{LOG2E ^ 0x80000000:x}, v{96+r}")
    for r in range(4):
        E(f"  v_exp_f32 v{24+r}, v{24+r}")
    E("  s_nop 0")
    for r in range(4):
        E(f"  v_add_f32 v{24+r}, 1.0, v{24+r}")
    for r in range(4):
        E(f"  v_rcp_f32 v{24+r}, v{24+r}")
    E("  s_nop 0")
    for r in range(4):
        E(f"  v_mul_f32 v{24+r}, v{96+r}, v{24+r}")
    for r in range(4):
        E(f"  v_cvt_pk_bf16_f32 v{24+r}, v{24+r}, v{24+r}")
    for r in range(4):
        E(f"  v_lshlrev_b32 v{24+r}, 16, v{24+r}")
    for r in range(4):
        E(f"  v_mul_f32 v{24+r}, v{64+r}, v{24+r}")
    for r in range(4):
        E(f"  v_cvt_pk_bf16_f32 v{24+r}, v{24+r}, v{24+r}")
    for r in range(4):
        E(f"  v_lshlrev_b32 v{24+r}, 16, v{24+r}")
        E(f"  v_lshlrev_b32 v{16+r}, 16, v{16+r}")
    for r in range(4):
        E(f"  v_add_f32 v{24+r}, v{16+r}, v{24+r}")
    for r in range(4):
        E(f"  v_cvt_pk_bf16_f32 v{24+r}, v{24+r}, v{24+r}")
    E("  s_mov_b32 s92, 0xffffffff")
    E("  s_mov_b32 s93, 0")
    E("  s_mov_b64 exec, s[92:93]")
    for r in range(4):
        E(f"  buffer_store_short v{24+r}, v13, s[{S_OUT}:{S_OUT+3}], s86 offen offset:{r*16}")
    E("  s_mov_b64 exec, -1")
    stamp(11)
    E("L_end:")
    stamp(12)
    stamp_dump()
    E("L_end2:")
    E("  s_endpgm")

E(f"; @launch grid=(256,1,1) block=(512,1,1) lds={L_SIZE}")
E('.amdgcn_target "amdgcn-amd-amdhsa--gfx950"')
E(".text")
gen()
E('.section .rodata,"a"')
E(".p2align 6")
E(f".amdhsa_kernel {NAME}_kernel")
E("  .amdhsa_next_free_vgpr 256")
E("  .amdhsa_next_free_sgpr 102")
E("  .amdhsa_accum_offset 256")
E("  .amdhsa_group_segment_fixed_size 0")
E("  .amdhsa_kernarg_size 96")
E("  .amdhsa_user_sgpr_count 2")
E("  .amdhsa_user_sgpr_kernarg_segment_ptr 1")
E("  .amdhsa_system_sgpr_workgroup_id_x 1")
E("  .amdhsa_float_denorm_mode_32 3")
E(".end_amdhsa_kernel")
out = [o for o in out if o is not None]
open(sys.argv[1] if len(sys.argv) > 1 else f"cdna_kernels/{NAME}.s", "w").write("\n".join(out) + "\n")
```

```python
import sys

NAME = "recurrent_scan__gqa_block_cached__glu_gated_reglu__decode"
out = []
def E(s=""):
    out.append(s)

DIAG = len(sys.argv) > 2 and "diag" in sys.argv[2:]

QP = 0x0
FP = 0x100000
OP = 0x200000
ML = 0x280000
P3 = 0x290000
STAMP_BASE = 0x400000
FLQ = 0x380000
FLA = 0x390000
FLS = 0x3a0000
SNON = 91
WS_SIZE = 0x20000000
L_RED = 0
L_ML = 32768
L_Q = 33024
L_O = 34048
L_SIZE = 36096
LOG2E = 0x3FB8AA3B
SCALE = 0x3DB504F3

S_K, S_V, S_WS, S_DBG, S_X, S_W, S_W2, S_OUT = 28, 32, 36, 40, 44, 48, 52, 56
SW, SPAIR, SSPLIT, SB, SKVH = 60, 61, 62, 63, 64
SROLE = 65
ST0, ST1 = 66, 67
SRID = 68
SLO, SHI, SSC, SL2E = 70, 71, 72, 73
SK0, SK1, SV0, SV1 = 74, 75, 76, 77
EX = 80

RING = [64, 96, 128, 160]
TT = 192
ACC = 224
SC = 32
QR = 192
DD = 16
def opt(name, default):
    for a in sys.argv[2:]:
        if a.startswith(name + "="):
            return int(a.split("=")[1])
    return default
NT = {0: "", 1: " nt", 2: " sc1 nt", 3: " sc0 sc1 nt", 4: " sc0 nt", 5: " sc1", 6: " sc0 sc1"}[opt("nt", 1)]
ROT = opt("rot", 1)
SPIN = 100000
NB1 = opt("nb1", 2)

STREGS = [3, 14, 15, 69, 78, 79, 83, 94, 95, 96, 97, 100, 101]
def stamp(i):
    if not DIAG:
        return
    E("  s_memrealtime s[98:99]")
    E("  s_waitcnt lgkmcnt(0)")
    E(f"  s_mov_b32 s{STREGS[i]}, s98")
def stamp_init():
    if not DIAG:
        return
    for r in STREGS:
        E(f"  s_mov_b32 s{r}, 0")
def stamp_dump():
    if not DIAG:
        return
    E("  s_waitcnt vmcnt(0) lgkmcnt(0)")
    E(f"  s_lshl_b32 s98, s2, 3")
    E(f"  s_add_u32 s98, s98, s{SW}")
    E(f"  s_lshl_b32 s98, s98, 7")
    E(f"  s_add_u32 s98, s98, 0x{STAMP_BASE:x}")
    E("  s_mov_b64 exec, 1")
    E("  v_mov_b32 v1, 0")
    for i, r in enumerate(STREGS):
        E(f"  v_mov_b32 v2, s{r}")
        E(f"  buffer_store_dword v2, v1, s[{S_WS}:{S_WS+3}], s98 offen offset:{i*4}")
        E("  s_waitcnt vmcnt(0)")

def srd(d, ptr, size):
    E(f"  s_mov_b32 s{d}, s{ptr}")
    E(f"  s_mov_b32 s{d+1}, s{ptr+1}")
    E(f"  s_mov_b32 s{d+2}, 0x{size:x}")
    E(f"  s_mov_b32 s{d+3}, 0x00020000")

def transpose(S, T):
    for q in range(4):
        for e in range(2):
            c = 2*q+e
            for p in range(4):
                sel = SLO if e == 0 else SHI
                E(f"  v_perm_b32 v{T+4*c+p}, v{S+4*(2*p+1)+q}, v{S+4*(2*p)+q}, s{sel}")

def bperm_xor(dst, src, addr_tmp, lane4, x):
    E(f"  v_xor_b32 v{addr_tmp}, {x*4}, v{lane4}")
    E(f"  ds_bpermute_b32 v{dst}, v{addr_tmp}, v{src}")
    E("  s_waitcnt lgkmcnt(0)")

def adv(s0):
    if ROT:
        E(f"  s_add_u32 s99, s{s0}, 8192")
        E(f"  s_and_b32 s99, s99, 0xffff")
        E(f"  s_and_b32 s{s0}, s{s0}, 0xffff0000")
        E(f"  s_or_b32 s{s0}, s{s0}, s99")
        E(f"  s_add_u32 s{s0+1}, s{s0}, 4096")
    else:
        E(f"  s_add_u32 s{s0}, s{s0}, 8192")
        E(f"  s_add_u32 s{s0+1}, s{s0+1}, 8192")

def issue_tile(idx):
    b = RING[idx % 4]
    if idx < 8:
        if opt("kpat", 0) == 1:
            for i in range(8):
                E(f"  buffer_load_dwordx4 v[{b+4*i}:{b+4*i+3}], v6, s[{S_K}:{S_K+3}], s{SK0+(i>>2)} offen offset:{(i&3)*256}{NT}")
        else:
          for t in range(2):
            for c in range(4):
                E(f"  buffer_load_dwordx4 v[{b+16*t+4*c}:{b+16*t+4*c+3}], v5, s[{S_K}:{S_K+3}], s{SK0+t} offen offset:{c*64}{NT}")
        adv(SK0)
    else:
        for i in range(8):
            E(f"  buffer_load_dwordx4 v[{b+4*i}:{b+4*i+3}], v6, s[{S_V}:{S_V+3}], s{SV0+(i>>2)} offen offset:{(i&3)*256}{NT}")
        adv(SV0)

def issue_tailw(j):
    b = RING[j]
    s = ST0 + j
    for i in range(8):
        E(f"  buffer_load_dwordx4 v[{b+4*i}:{b+4*i+3}], v7, s[{S_W}:{S_W+3}], s{s} offen")
        if i < 7:
            E(f"  s_add_u32 s{s}, s{s}, 8192")

lbl = [0]
def poll_flags(vaddr, active_sgpr_pair):
    lbl[0] += 1
    L = f"L_poll{lbl[0]}"
    E(f"  s_mov_b32 s82, {SPIN}")
    E(f"  buffer_load_dword v8, v{vaddr}, s[{S_WS}:{S_WS+3}], 0 offen sc1")
    E(f"{L}:")
    E("  s_sleep 1")
    E(f"  buffer_load_dword v9, v{vaddr}, s[{S_WS}:{S_WS+3}], 0 offen sc1")
    E("  s_waitcnt vmcnt(1)")
    E(f"  v_cmp_ne_u32 vcc, s{SNON}, v8")
    E(f"  s_and_b64 vcc, vcc, s[{active_sgpr_pair}:{active_sgpr_pair+1}]")
    E(f"  s_cbranch_scc0 {L}_done")
    E("  s_sleep 1")
    E(f"  buffer_load_dword v8, v{vaddr}, s[{S_WS}:{S_WS+3}], 0 offen sc1")
    E("  s_waitcnt vmcnt(1)")
    E(f"  v_cmp_ne_u32 vcc, s{SNON}, v9")
    E(f"  s_and_b64 vcc, vcc, s[{active_sgpr_pair}:{active_sgpr_pair+1}]")
    E(f"  s_cbranch_scc0 {L}_done")
    E("  s_sub_u32 s82, s82, 1")
    E("  s_cmp_eq_u32 s82, 0")
    E(f"  s_cbranch_scc0 {L}")
    E(f"{L}_done:")
    E("  s_waitcnt vmcnt(0)")

def set_flag(base, idx_sgpr):
    E(f"  s_lshl_b32 s89, s{idx_sgpr}, 7")
    E(f"  s_add_u32 s89, s89, 0x{base:x}")
    E("  v_mov_b32 v8, s89")
    E(f"  v_mov_b32 v9, s{SNON}")
    E(f"  s_mov_b64 s[{EX}:{EX+1}], exec")
    E("  s_mov_b64 exec, 1")
    E(f"  buffer_store_dword v9, v8, s[{S_WS}:{S_WS+3}], 0 offen sc1")
    E(f"  s_mov_b64 exec, s[{EX}:{EX+1}]")

def gen():
    K = NAME + "_kernel"
    E(f".globl {K}")
    E(".p2align 8")
    E(f".type {K},@function")
    E(f"{K}:")
    E("  s_cmp_ge_u32 s2, 256")
    E("  s_cbranch_scc1 L_end2")
    E("  s_load_dwordx16 s[4:19], s[0:1], 0")
    E("  s_load_dwordx8 s[20:27], s[0:1], 64")
    E("  v_and_b32 v1, 63, v0")
    E("  v_lshrrev_b32 v2, 6, v0")
    E("  v_and_b32 v3, 15, v1")
    E("  v_lshrrev_b32 v4, 4, v1")
    E(f"  v_readfirstlane_b32 s{SW}, v2")
    E(f"  s_lshr_b32 s{SPAIR}, s2, 2")
    E(f"  s_and_b32 s{SSPLIT}, s2, 3")
    E(f"  s_lshr_b32 s{SB}, s{SPAIR}, 3")
    E(f"  s_and_b32 s{SKVH}, s{SPAIR}, 7")
    E(f"  s_mov_b32 s{SLO}, 0x05040100")
    E(f"  s_mov_b32 s{SHI}, 0x07060302")
    E(f"  s_mov_b32 s{SSC}, 0x{SCALE:x}")
    E(f"  s_mov_b32 s{SL2E}, 0x{LOG2E:x}")
    E("  v_lshlrev_b32 v5, 8, v3")
    E("  v_lshl_add_u32 v5, v4, 4, v5")
    E("  v_lshlrev_b32 v6, 10, v4")
    E("  v_lshl_add_u32 v6, v3, 4, v6")
    E(f"  s_lshl_b32 s{SK0}, s{SPAIR}, 21")
    E(f"  s_lshl_b32 s84, s{SSPLIT}, 19")
    E(f"  s_add_u32 s{SK0}, s{SK0}, s84")
    E(f"  s_lshl_b32 s84, s{SW}, 16")
    E(f"  s_add_u32 s{SK0}, s{SK0}, s84")
    if ROT:
        E(f"  s_lshr_b32 s84, s2, 2")
        E(f"  s_add_u32 s84, s84, s2")
        E(f"  s_add_u32 s84, s84, s{SW}")
        E(f"  s_and_b32 s84, s84, 7")
        E(f"  s_lshl_b32 s84, s84, 13")
        E(f"  s_add_u32 s{SK0}, s{SK0}, s84")
    E(f"  s_add_u32 s{SK1}, s{SK0}, 4096")
    E(f"  s_mov_b32 s{SV0}, s{SK0}")
    E(f"  s_mov_b32 s{SV1}, s{SK1}")
    E("  s_waitcnt lgkmcnt(0)")
    srd(S_K, 6, 0x8000000)
    srd(S_V, 8, 0x8000000)
    srd(S_WS, 26, WS_SIZE)
    srd(S_DBG, 24, 256)
    srd(S_X, 4, 8192)
    srd(S_OUT, 22, 8192)
    stamp_init()
    stamp(0)
    E(f"  s_cmp_eq_u32 s{SW}, 0")
    E("  s_cbranch_scc1 L_helper")
    E("  s_barrier")
    for idx in range(NB1):
        issue_tile(idx)
    E("  s_branch L_join")
    E("L_helper:")
    E("  s_cmp_lg_u32 s2, 0")
    E("  s_cbranch_scc1 L_h_nonon")
    E("  s_memrealtime s[98:99]")
    E("  s_waitcnt lgkmcnt(0)")
    E("  s_or_b32 s98, s98, 1")
    E("  v_mov_b32 v8, 0")
    E("  v_mov_b32 v9, s98")
    E(f"  s_mov_b64 s[{EX}:{EX+1}], exec")
    E("  s_mov_b64 exec, 1")
    E(f"  buffer_store_dword v9, v8, s[{S_DBG}:{S_DBG+3}], 0 offen sc1")
    E(f"  s_mov_b64 exec, s[{EX}:{EX+1}]")
    E("L_h_nonon:")
    E("  s_and_b32 s84, s2, 7")
    E("  s_lshr_b32 s85, s2, 3")
    srd(S_W, 10, 512*8192)
    E("  s_cmp_lt_u32 s85, 14")
    E("  s_cselect_b32 s86, s16, s18")
    E("  s_cselect_b32 s87, s17, s19")
    E("  s_cselect_b32 s88, 0, 14")
    E("  s_sub_u32 s88, s85, s88")
    E(f"  s_mov_b32 s{S_W2}, s86")
    E(f"  s_mov_b32 s{S_W2+1}, s87")
    E(f"  s_mov_b32 s{S_W2+2}, 0x{512*3584:x}")
    E(f"  s_mov_b32 s{S_W2+3}, 0x00020000")
    E("  s_cmp_lt_u32 s2, 224")
    E("  s_cbranch_scc1 L_h_guok")
    E(f"  s_mov_b32 s{S_W2+2}, 0")
    E("L_h_guok:")
    E("  v_and_b32 v8, 7, v1")
    E("  v_lshrrev_b32 v9, 3, v1")
    E("  v_lshlrev_b32 v8, 10, v8")
    E("  v_lshl_add_u32 v8, v9, 7, v8")
    for i in range(8):
        E(f"  buffer_load_dwordx4 v[{96+4*i}:{96+4*i+3}], v8, s[{S_X}:{S_X+3}], 0 offen offset:{16*i}")
    E("  v_and_b32 v9, 7, v3")
    E("  v_lshlrev_b32 v9, 10, v9")
    E("  v_lshl_add_u32 v9, v4, 4, v9")
    E("  s_lshl_b32 s89, s84, 7")
    E(f"  buffer_load_dwordx4 v[24:27], v9, s[{S_X}:{S_X+3}], s89 offen")
    E(f"  buffer_load_dwordx4 v[28:31], v9, s[{S_X}:{S_X+3}], s89 offen offset:64")
    E("  v_lshlrev_b32 v10, 16, v4")
    E("  v_lshl_add_u32 v10, v3, 4, v10")
    E("  s_lshl_b32 s89, s84, 19")
    E("  s_lshl_b32 s90, s85, 8")
    E("  s_add_u32 s89, s89, s90")
    for ks in range(2):
        for i in range(8):
            r = 192 + 32*ks + 4*i
            E(f"  buffer_load_dwordx4 v[{r}:{r+3}], v10, s[{S_W}:{S_W+3}], s89 offen")
            E(f"  s_add_u32 s89, s89, {8192 if i < 7 else 8192*25}")
    E("  s_movk_i32 s90, 3584*8")
    E("  v_mul_lo_u32 v11, v4, s90")
    E("  v_lshl_add_u32 v11, v3, 4, v11")
    E("  s_mul_i32 s89, s84, 64*3584")
    E("  s_lshl_b32 s90, s88, 8")
    E("  s_add_u32 s89, s89, s90")
    for ks in range(2):
        for i in range(8):
            r = 32 + 32*ks + 4*i
            E(f"  buffer_load_dwordx4 v[{r}:{r+3}], v11, s[{S_W2}:{S_W2+3}], s89 offen")
            E(f"  s_add_u32 s89, s89, {3584 if i < 7 else 3584*25}")
    E("  s_barrier")
    E("  v_lshlrev_b32 v8, 2, v1")
    E("  s_waitcnt vmcnt(34)")
    for i in range(32):
        E(f"  v_lshlrev_b32 v{128+2*i}, 16, v{96+i}")
        E(f"  v_and_b32 v{129+2*i}, 0xffff0000, v{96+i}")
    for k in range(4):
        E(f"  v_add_f32 v{12+k}, v{128+k}, v{132+k}")
    for i in range(8, 64, 4):
        for k in range(4):
            E(f"  v_add_f32 v{12+k}, v{12+k}, v{128+i+k}")
    E("  v_add_f32 v12, v12, v13")
    E("  v_add_f32 v14, v14, v15")
    E("  v_add_f32 v12, v12, v14")
    for x in (8, 16, 32):
        bperm_xor(13, 12, 9, 8, x)
        E("  v_add_f32 v12, v12, v13")
    E("  v_mul_f32 v12, 0x3b000000, v12")
    for k in range(4):
        E(f"  v_mov_b32 v{96+k}, 0")
    for i in range(0, 64, 4):
        for k in range(4):
            E(f"  v_sub_f32 v{100+k}, v{128+i+k}, v12")
        for k in range(4):
            E(f"  v_fmac_f32 v{96+k}, v{100+k}, v{100+k}")
    E("  v_add_f32 v96, v96, v97")
    E("  v_add_f32 v98, v98, v99")
    E("  v_add_f32 v14, v96, v98")
    for x in (8, 16, 32):
        bperm_xor(13, 14, 9, 8, x)
        E("  v_add_f32 v14, v14, v13")
    E("  v_mul_f32 v14, 0x3b000000, v14")
    E("  v_cvt_pk_bf16_f32 v13, v12, v14")
    E("  v_lshlrev_b32 v12, 16, v13")
    E("  v_and_b32 v14, 0xffff0000, v13")
    E("  v_add_f32 v14, 0x3727c5ac, v14")
    E("  v_cvt_pk_bf16_f32 v13, v14, v14")
    E("  v_lshlrev_b32 v14, 16, v13")
    E("  v_sqrt_f32 v14, v14")
    E("  s_nop 0")
    E("  v_cvt_pk_bf16_f32 v13, v14, v14")
    E("  v_lshlrev_b32 v14, 16, v13")
    E("  v_rcp_f32 v15, v14")
    E("  s_waitcnt vmcnt(32)")
    for i in range(8):
        E(f"  v_lshlrev_b32 v{96+2*i}, 16, v{24+i}")
        E(f"  v_and_b32 v{97+2*i}, 0xffff0000, v{24+i}")
    for i in range(16):
        E(f"  v_sub_f32 v{96+i}, v{96+i}, v12")
    for i in range(8):
        E(f"  v_cvt_pk_bf16_f32 v{24+i}, v{96+2*i}, v{97+2*i}")
    for i in range(8):
        E(f"  v_lshlrev_b32 v{96+2*i}, 16, v{24+i}")
        E(f"  v_and_b32 v{97+2*i}, 0xffff0000, v{24+i}")
    for i in range(16):
        E(f"  v_mul_f32 v{112+i}, v{96+i}, v15")
    for i in range(16):
        E(f"  v_fma_f32 v{128+i}, -v{112+i}, v14, v{96+i}")
    for i in range(16):
        E(f"  v_fma_f32 v{112+i}, v{128+i}, v15, v{112+i}")
    for i in range(8):
        E(f"  v_cvt_pk_bf16_f32 v{16+i}, v{112+2*i}, v{113+2*i}")
    E("  v_lshlrev_b32 v12, 9, v3")
    E("  v_lshl_add_u32 v12, v4, 4, v12")
    E("  v_cmp_gt_u32 vcc, 8, v3")
    E("  s_mov_b64 s[92:93], vcc")
    stamp(1)
    E("  s_waitcnt vmcnt(16)")
    for ks in range(2):
        transpose(192 + 32*ks, 128)
        E("  s_nop 1")
        for c in range(8):
            cc = "0" if ks == 0 else f"v[{160+4*c}:{160+4*c+3}]"
            E(f"  v_mfma_f32_16x16x32_bf16 v[{160+4*c}:{160+4*c+3}], v[{128+4*c}:{128+4*c+3}], v[{16+4*ks}:{19+4*ks}], {cc}")
    E("  s_lshl_b32 s89, s84, 5")
    E("  s_add_u32 s89, s89, s85")
    E("  s_lshl_b32 s89, s89, 12")
    E(f"  s_mov_b64 s[{EX}:{EX+1}], exec")
    E("  s_mov_b64 exec, s[92:93]")
    E("  s_nop 4")
    for c in range(8):
        E(f"  buffer_store_dwordx4 v[{160+4*c}:{160+4*c+3}], v12, s[{S_WS}:{S_WS+3}], s89 offen offset:{c*64} sc1")
    E(f"  s_mov_b64 exec, s[{EX}:{EX+1}]")
    E("  s_cmp_ge_u32 s2, 224")
    E("  s_cbranch_scc1 L_h_nogu")
    E("  s_waitcnt vmcnt(8)")
    for ks in range(2):
        transpose(32 + 32*ks, 128)
        E("  s_nop 1")
        for c in range(8):
            cc = "0" if ks == 0 else f"v[{192+4*c}:{192+4*c+3}]"
            E(f"  v_mfma_f32_16x16x32_bf16 v[{192+4*c}:{192+4*c+3}], v[{128+4*c}:{128+4*c+3}], v[{16+4*ks}:{19+4*ks}], {cc}")
    E("  s_mul_i32 s89, s84, 28")
    E("  s_add_u32 s89, s89, s85")
    E("  s_lshl_b32 s89, s89, 12")
    E(f"  s_add_u32 s89, s89, 0x{FP:x}")
    E(f"  s_mov_b64 s[{EX}:{EX+1}], exec")
    E("  s_mov_b64 exec, s[92:93]")
    E("  s_nop 4")
    for c in range(8):
        E(f"  buffer_store_dwordx4 v[{192+4*c}:{192+4*c+3}], v12, s[{S_WS}:{S_WS+3}], s89 offen offset:{c*64} sc1")
    E(f"  s_mov_b64 exec, s[{EX}:{EX+1}]")
    E("L_h_nogu:")
    stamp(2)
    E("  v_mov_b32 v8, 0")
    E(f"  s_mov_b32 s82, {SPIN}")
    E("L_h_non:")
    E(f"  buffer_load_dword v9, v8, s[{S_DBG}:{S_DBG+3}], 0 offen sc1")
    E("  s_waitcnt vmcnt(0)")
    E(f"  v_readfirstlane_b32 s{SNON}, v9")
    E("  s_nop 3")
    E(f"  s_cmp_lg_u32 s{SNON}, 0")
    E("  s_cbranch_scc1 L_h_non_done")
    E("  s_sleep 1")
    E("  s_sub_u32 s82, s82, 1")
    E("  s_cmp_eq_u32 s82, 0")
    E("  s_cbranch_scc0 L_h_non")
    E("L_h_non_done:")
    set_flag(FLQ, 2)
    stamp(3)
    E("  v_and_b32 v11, 31, v1")
    E(f"  s_lshl_b32 s89, s{SKVH}, 5")
    E("  v_add_u32 v11, s89, v11")
    E("  v_lshlrev_b32 v11, 7, v11")
    E(f"  v_add_u32 v11, 0x{FLQ:x}, v11")
    E("  s_mov_b64 s[92:93], exec")
    poll_flags(11, 92)
    stamp(4)
    E("  v_lshrrev_b32 v10, 5, v1")
    E("  v_and_b32 v11, 31, v1")
    E("  v_lshlrev_b32 v12, 12, v10")
    E("  v_lshl_add_u32 v12, v11, 4, v12")
    E(f"  s_lshl_b32 s89, s{SKVH}, 14")
    E(f"  s_lshl_b32 s90, s{SB}, 9")
    E("  s_add_u32 s89, s89, s90")
    E("  s_add_u32 s90, s89, 8192")
    for kc in range(8):
        E(f"  buffer_load_dwordx4 v[{64+4*kc}:{64+4*kc+3}], v12, s[{S_WS}:{S_WS+3}], s89 offen sc1")
        E(f"  buffer_load_dwordx4 v[{96+4*kc}:{96+4*kc+3}], v12, s[{S_WS}:{S_WS+3}], s90 offen sc1")
        if kc < 7:
            E("  s_add_u32 s89, s89, 131072")
            E("  s_add_u32 s90, s90, 131072")
    E("  v_and_b32 v13, 3, v11")
    E("  v_lshrrev_b32 v14, 2, v11")
    E("  v_lshlrev_b32 v13, 5, v13")
    E("  v_add_u32 v13, v13, v14")
    E("  v_lshl_add_u32 v13, v10, 7, v13")
    E("  v_lshlrev_b32 v13, 1, v13")
    E("  s_waitcnt vmcnt(0)")
    for half in range(2):
        b0 = 64 + 32*half
        for r in range(4):
            E(f"  v_add_f32 v{b0+r}, v{b0+r}, v{b0+4+r}")
            E(f"  v_add_f32 v{b0+8+r}, v{b0+8+r}, v{b0+12+r}")
            E(f"  v_add_f32 v{b0+16+r}, v{b0+16+r}, v{b0+20+r}")
            E(f"  v_add_f32 v{b0+24+r}, v{b0+24+r}, v{b0+28+r}")
        for r in range(4):
            E(f"  v_add_f32 v{b0+r}, v{b0+r}, v{b0+8+r}")
            E(f"  v_add_f32 v{b0+16+r}, v{b0+16+r}, v{b0+24+r}")
        for r in range(4):
            E(f"  v_add_f32 v{b0+r}, v{b0+r}, v{b0+16+r}")
        E(f"  v_cvt_pk_bf16_f32 v{b0+4}, v{b0}, v{b0+1}")
        E(f"  v_cvt_pk_bf16_f32 v{b0+5}, v{b0+2}, v{b0+3}")
        E(f"  ds_write_b16 v13, v{b0+4} offset:{L_Q+half*512}")
        E(f"  ds_write_b16_d16_hi v13, v{b0+4} offset:{L_Q+half*512+16}")
        E(f"  ds_write_b16 v13, v{b0+5} offset:{L_Q+half*512+32}")
        E(f"  ds_write_b16_d16_hi v13, v{b0+5} offset:{L_Q+half*512+48}")
    E("  s_waitcnt lgkmcnt(0)")
    for idx in range(NB1):
        issue_tile(idx)
    E("L_join:")
    E(f"  s_mov_b32 s{SROLE}, 0")
    E(f"  s_mov_b32 s{ST0}, 0")
    E(f"  s_mov_b32 s{ST1}, 0")
    E(f"  s_lshr_b32 s{SRID}, s2, 3")
    E("  s_and_b32 s84, s2, 7")
    E(f"  s_sub_u32 s85, s84, s{SRID}")
    E("  s_and_b32 s85, s85, 7")
    srd(S_W, 12, 4096*1024)
    E("  s_cmp_eq_u32 s85, 0")
    E("  s_cbranch_scc1 L_role_wo")
    E("  s_cmp_eq_u32 s85, 5")
    E("  s_cbranch_scc1 L_role_fin")
    E("  s_cmp_lg_u32 s85, 3")
    E("  s_cbranch_scc1 L_norole")
    E(f"  s_cmp_ge_u32 s{SRID}, 14")
    E("  s_cbranch_scc1 L_norole")
    srd(S_W, 20, 1792*1024)
    E(f"  s_mov_b32 s{SROLE}, 2")
    E("  s_branch L_role_w")
    E("L_role_wo:")
    E(f"  s_mov_b32 s{SROLE}, 1")
    E("L_role_w:")
    E(f"  s_lshl_b32 s84, s{SRID}, 7")
    E(f"  s_and_b32 s85, s{SW}, 1")
    E("  s_lshl_b32 s85, s85, 2")
    E("  s_add_u32 s84, s84, s85")
    E("  s_lshl_b32 s84, s84, 10")
    E(f"  s_lshr_b32 s85, s{SW}, 1")
    E("  s_lshl_b32 s85, s85, 8")
    E(f"  s_add_u32 s{ST0}, s84, s85")
    E(f"  s_add_u32 s{ST1}, s{ST0}, 2048")
    E("  s_branch L_roledone")
    E("L_role_fin:")
    E(f"  s_mov_b32 s{SROLE}, 3")
    E("L_norole:")
    E(f"  s_mov_b32 s{S_W+2}, 0")
    E("L_roledone:")
    E("  v_and_b32 v7, 1, v4")
    E("  v_lshlrev_b32 v7, 6, v7")
    E("  v_lshrrev_b32 v8, 1, v4")
    E("  v_add_u32 v7, v7, v8")
    E("  v_lshlrev_b32 v7, 10, v7")
    E("  v_lshl_add_u32 v7, v3, 4, v7")
    E("  s_barrier")
    stamp(5)
    for idx in range(NB1, 4):
        issue_tile(idx)
    E("  v_lshlrev_b32 v9, 8, v3")
    E("  v_lshl_add_u32 v9, v4, 4, v9")
    for c in range(4):
        for k in range(4):
            E(f"  v_mov_b32 v{QR+4*c+k}, 0")
    E("  v_cmp_gt_u32 vcc, 4, v3")
    E(f"  s_and_saveexec_b64 s[{EX}:{EX+1}], vcc")
    for c in range(4):
        E(f"  ds_read_b128 v[{QR+4*c}:{QR+4*c+3}], v9 offset:{L_Q+c*64}")
    E(f"  s_mov_b64 exec, s[{EX}:{EX+1}]")
    E("  v_mov_b32 v12, 0xff800000")
    E("  s_waitcnt lgkmcnt(0)")
    for idx in range(8):
        b = RING[idx % 4]
        E("  s_waitcnt vmcnt(24)")
        for t in range(2):
            for c in range(4):
                cc = "0" if c == 0 else f"v[{DD+4*t}:{DD+4*t+3}]"
                E(f"  v_mfma_f32_16x16x32_bf16 v[{DD+4*t}:{DD+4*t+3}], v[{b+16*t+4*c}:{b+16*t+4*c+3}], v[{QR+4*c}:{QR+4*c+3}], {cc}")
        issue_tile(idx+4)
        E("  s_nop 1")
        for p in range(4):
            E(f"  v_cvt_pk_bf16_f32 v{24+p}, v{DD+2*p}, v{DD+2*p+1}")
        for p in range(4):
            E(f"  v_lshlrev_b32 v{DD+2*p}, 16, v{24+p}")
            E(f"  v_and_b32 v{DD+2*p+1}, 0xffff0000, v{24+p}")
        for k in range(8):
            E(f"  v_mul_f32 v{DD+k}, s{SSC}, v{DD+k}")
        for p in range(4):
            E(f"  v_cvt_pk_bf16_f32 v{SC+4*idx+p}, v{DD+2*p}, v{DD+2*p+1}")
        for p in range(4):
            E(f"  v_max3_f32 v12, v{DD+2*p}, v{DD+2*p+1}, v12")
    E("  v_lshlrev_b32 v8, 2, v1")
    for x in (16, 32):
        bperm_xor(13, 12, 9, 8, x)
        E("  v_max_f32 v12, v12, v13")
    E("  v_cvt_pk_bf16_f32 v13, v12, v12")
    E("  v_lshlrev_b32 v12, 16, v13")
    E(f"  v_mul_f32 v13, s{SL2E}, v12")
    E("  v_mov_b32 v14, 0")
    E("  v_mov_b32 v15, 0")
    stamp(6)
    for idx in range(8, 16):
        j = idx - 8
        b = RING[idx % 4]
        E(f"  ; ---- V tile {j}")
        for p in range(4):
            E(f"  v_lshlrev_b32 v{DD+2*p}, 16, v{SC+4*j+p}")
            E(f"  v_and_b32 v{DD+2*p+1}, 0xffff0000, v{SC+4*j+p}")
        for k in range(8):
            E(f"  v_fma_f32 v{DD+k}, v{DD+k}, s{SL2E}, -v13")
        for k in range(8):
            E(f"  v_exp_f32 v{DD+k}, v{DD+k}")
        E("  s_nop 0")
        for p in range(4):
            E(f"  v_cvt_pk_bf16_f32 v{24+p}, v{DD+2*p}, v{DD+2*p+1}")
        for p in range(4):
            E(f"  v_add_f32 v14, v14, v{DD+2*p}")
            E(f"  v_add_f32 v15, v15, v{DD+2*p+1}")
        n_tiles = min(3, 15 - idx)
        n_tw = max(0, min(2, idx - 12))
        E(f"  s_waitcnt vmcnt({(n_tiles + n_tw) * 8})")
        transpose(b, TT)
        E("  s_nop 1")
        for c in range(8):
            cc = "0" if j == 0 else f"v[{ACC+4*c}:{ACC+4*c+3}]"
            E(f"  v_mfma_f32_16x16x32_bf16 v[{ACC+4*c}:{ACC+4*c+3}], v[{TT+4*c}:{TT+4*c+3}], v[24:27], {cc}")
        if idx + 4 < 16:
            issue_tile(idx+4)
        elif idx in (12, 13):
            issue_tailw(idx - 12)
    stamp(7)
    E("  v_add_f32 v14, v14, v15")
    for x in (16, 32):
        bperm_xor(15, 14, 9, 8, x)
        E("  v_add_f32 v14, v14, v15")
    E("  v_lshlrev_b32 v9, 6, v3")
    E("  v_lshl_add_u32 v9, v4, 4, v9")
    E(f"  s_lshl_b32 s84, s{SW}, 11")
    E("  v_add_u32 v9, s84, v9")
    E("  v_lshlrev_b32 v10, 3, v3")
    E(f"  s_lshl_b32 s84, s{SW}, 5")
    E("  v_add_u32 v10, s84, v10")
    E("  v_mov_b32 v13, v14")
    E("  v_cmp_gt_u32 vcc, 4, v3")
    E(f"  s_and_saveexec_b64 s[{EX}:{EX+1}], vcc")
    for c in range(8):
        E(f"  ds_write_b128 v9, v[{ACC+4*c}:{ACC+4*c+3}] offset:{L_RED+c*256}")
    E(f"  ds_write_b64 v10, v[12:13] offset:{L_ML}")
    E(f"  s_mov_b64 exec, s[{EX}:{EX+1}]")
    E("  s_waitcnt lgkmcnt(0)")
    E("  s_barrier")
    E(f"  s_cmp_ge_u32 s{SW}, 2")
    E("  s_cbranch_scc1 L_comb_done")
    E("  v_lshrrev_b32 v10, 5, v0")
    E("  v_bfe_u32 v11, v0, 2, 3")
    E("  v_and_b32 v9, 3, v0")
    E("  v_lshlrev_b32 v9, 4, v9")
    E("  v_lshl_add_u32 v9, v10, 6, v9")
    E("  v_lshl_add_u32 v9, v11, 8, v9")
    for w in range(8):
        E(f"  ds_read_b128 v[{192+4*w}:{192+4*w+3}], v9 offset:{L_RED+w*2048}")
    E("  v_lshlrev_b32 v11, 3, v10")
    for w in range(8):
        E(f"  ds_read_b64 v[{32+2*w}:{33+2*w}], v11 offset:{L_ML+w*32}")
    E("  s_waitcnt lgkmcnt(0)")
    E("  v_max3_f32 v12, v32, v34, v36")
    E("  v_max3_f32 v12, v12, v38, v40")
    E("  v_max3_f32 v12, v12, v42, v44")
    E("  v_max_f32 v12, v12, v46")
    for w in range(8):
        E(f"  v_sub_f32 v{48+w}, v{32+2*w}, v12")
    for w in range(8):
        E(f"  v_mul_f32 v{48+w}, s{SL2E}, v{48+w}")
    for w in range(8):
        E(f"  v_exp_f32 v{48+w}, v{48+w}")
    E("  s_nop 0")
    for r in range(4):
        E(f"  v_mul_f32 v{16+r}, v48, v{192+r}")
    E("  v_mul_f32 v13, v48, v33")
    for w in range(1, 8):
        for r in range(4):
            E(f"  v_fmac_f32 v{16+r}, v{48+w}, v{192+4*w+r}")
        E(f"  v_fmac_f32 v13, v{48+w}, v{33+2*w}")
    E("  v_lshlrev_b32 v9, 4, v0")
    E("  s_lshl_b32 s84, s2, 11")
    E(f"  s_add_u32 s84, s84, 0x{OP:x}")
    E(f"  buffer_store_dwordx4 v[16:19], v9, s[{S_WS}:{S_WS+3}], s84 offen sc1")
    E("  v_and_b32 v9, 31, v0")
    E("  v_cmp_eq_u32 vcc, 0, v9")
    E("  s_lshl_b32 s84, s2, 5")
    E(f"  s_add_u32 s84, s84, 0x{ML:x}")
    E(f"  s_and_saveexec_b64 s[{EX}:{EX+1}], vcc")
    E(f"  buffer_store_dwordx2 v[12:13], v11, s[{S_WS}:{S_WS+3}], s84 offen sc1")
    E(f"  s_mov_b64 exec, s[{EX}:{EX+1}]")
    E("  s_waitcnt vmcnt(0)")
    E("L_comb_done:")
    E("  s_barrier")
    E(f"  s_cmp_lg_u32 s{SW}, 0")
    E("  s_cbranch_scc1 L_noflag")
    set_flag(FLA, 2)
    E("L_noflag:")
    stamp(8)
    E(f"  s_cmp_eq_u32 s{SROLE}, 0")
    E("  s_cbranch_scc1 L_end")
    E(f"  s_cmp_eq_u32 s{SROLE}, 3")
    E("  s_cbranch_scc1 L_final")
    E("  s_waitcnt vmcnt(0)")
    transpose(RING[0], 128)
    transpose(RING[1], 160)
    E(f"  s_cmp_lg_u32 s{SW}, 0")
    E("  s_cbranch_scc1 L_t_wait")
    E(f"  s_cmp_eq_u32 s{SROLE}, 2")
    E("  s_cbranch_scc1 L_t_pollf")
    E("  v_bfe_u32 v11, v1, 2, 3")
    E("  v_lshlrev_b32 v11, 5, v11")
    E("  v_and_b32 v12, 3, v1")
    E("  v_add_u32 v11, v11, v12")
    E(f"  s_lshr_b32 s89, s{SRID}, 2")
    E("  s_lshl_b32 s89, s89, 2")
    E("  v_add_u32 v11, s89, v11")
    E("  v_lshlrev_b32 v11, 7, v11")
    E(f"  v_add_u32 v11, 0x{FLA:x}, v11")
    E("  s_mov_b64 s[92:93], exec")
    poll_flags(11, 92)
    E("  s_branch L_t_wait")
    E("L_t_pollf:")
    E("  v_lshlrev_b32 v11, 7, v1")
    E(f"  v_add_u32 v11, 0x{FLQ:x}, v11")
    E("  s_mov_b64 s[92:93], exec")
    for j in range(4):
        if j == 3:
            E("  s_mov_b32 s93, 0")
        poll_flags(11, 92)
        if j < 3:
            E(f"  v_add_u32 v11, {64*128}, v11")
    E("L_t_wait:")
    E("  s_barrier")
    stamp(9)
    E(f"  s_cmp_ge_u32 s{SW}, 4")
    E("  s_cbranch_scc1 L_t_bdone")
    E("  v_lshrrev_b32 v10, 5, v0")
    E("  v_and_b32 v11, 31, v0")
    E(f"  s_cmp_eq_u32 s{SROLE}, 2")
    E("  s_cbranch_scc1 L_t_down")
    E("  v_lshlrev_b32 v12, 16, v10")
    E("  v_lshl_add_u32 v12, v11, 4, v12")
    E(f"  s_lshr_b32 s84, s{SRID}, 2")
    E(f"  s_and_b32 s85, s{SRID}, 3")
    E("  s_lshl_b32 s86, s84, 13")
    E("  s_lshl_b32 s87, s85, 9")
    E("  s_add_u32 s86, s86, s87")
    E(f"  s_add_u32 s86, s86, 0x{OP:x}")
    for s in range(4):
        E(f"  buffer_load_dwordx4 v[{64+4*s}:{64+4*s+3}], v12, s[{S_WS}:{S_WS+3}], s86 offen offset:{s*2048} sc1") if s < 2 else None
    E("  s_add_u32 s86, s86, 4096")
    for s in range(2, 4):
        E(f"  buffer_load_dwordx4 v[{64+4*s}:{64+4*s+3}], v12, s[{S_WS}:{S_WS+3}], s86 offen offset:{(s-2)*2048} sc1")
    E("  v_lshlrev_b32 v12, 10, v10")
    E("  s_lshl_b32 s86, s84, 7")
    E("  s_lshl_b32 s87, s85, 3")
    E("  s_add_u32 s86, s86, s87")
    E(f"  s_add_u32 s86, s86, 0x{ML:x}")
    for s in range(4):
        E(f"  buffer_load_dwordx2 v[{32+2*s}:{33+2*s}], v12, s[{S_WS}:{S_WS+3}], s86 offen offset:{s*32} sc1")
    E("  s_waitcnt vmcnt(0)")
    E("  v_max3_f32 v12, v32, v34, v36")
    E("  v_max_f32 v12, v12, v38")
    for s in range(4):
        E(f"  v_sub_f32 v{40+s}, v{32+2*s}, v12")
    for s in range(4):
        E(f"  v_mul_f32 v{40+s}, s{SL2E}, v{40+s}")
    for s in range(4):
        E(f"  v_exp_f32 v{40+s}, v{40+s}")
    E("  s_nop 0")
    E("  v_mul_f32 v13, v40, v33")
    for s in range(1, 4):
        E(f"  v_fmac_f32 v13, v{40+s}, v{33+2*s}")
    for j in range(4):
        E(f"  v_mul_f32 v{44+j}, v40, v{64+j}")
    for s in range(1, 4):
        for j in range(4):
            E(f"  v_fmac_f32 v{44+j}, v{40+s}, v{64+4*s+j}")
    E("  v_rcp_f32 v12, v13")
    E("  s_nop 0")
    for j in range(4):
        E(f"  v_mul_f32 v{64+j}, v{44+j}, v12")
    for j in range(4):
        E(f"  v_fma_f32 v{80+j}, -v{64+j}, v13, v{44+j}")
    for j in range(4):
        E(f"  v_fma_f32 v{64+j}, v{80+j}, v12, v{64+j}")
    E("  v_cvt_pk_bf16_f32 v16, v64, v65")
    E("  v_cvt_pk_bf16_f32 v17, v66, v67")
    E("  s_branch L_t_bst")
    E("L_t_down:")
    E("  v_lshlrev_b32 v12, 9, v10")
    E("  v_lshl_add_u32 v12, v11, 4, v12")
    E(f"  s_lshl_b32 s84, s{SRID}, 12")
    E(f"  s_add_u32 s84, s84, 0x{FP:x}")
    E(f"  s_add_u32 s85, s84, {14*4096}")
    for kc in range(8):
        E(f"  buffer_load_dwordx4 v[{32+4*kc}:{32+4*kc+3}], v12, s[{S_WS}:{S_WS+3}], s84 offen sc1")
        E(f"  buffer_load_dwordx4 v[{64+4*kc}:{64+4*kc+3}], v12, s[{S_WS}:{S_WS+3}], s85 offen sc1")
        if kc < 7:
            E(f"  s_add_u32 s84, s84, {28*4096}")
            E(f"  s_add_u32 s85, s85, {28*4096}")
    E("  s_waitcnt vmcnt(0)")
    for b0 in (32, 64):
        for r in range(4):
            E(f"  v_add_f32 v{b0+r}, v{b0+r}, v{b0+4+r}")
            E(f"  v_add_f32 v{b0+8+r}, v{b0+8+r}, v{b0+12+r}")
            E(f"  v_add_f32 v{b0+16+r}, v{b0+16+r}, v{b0+20+r}")
            E(f"  v_add_f32 v{b0+24+r}, v{b0+24+r}, v{b0+28+r}")
        for r in range(4):
            E(f"  v_add_f32 v{b0+r}, v{b0+r}, v{b0+8+r}")
            E(f"  v_add_f32 v{b0+16+r}, v{b0+16+r}, v{b0+24+r}")
        for r in range(4):
            E(f"  v_add_f32 v{b0+r}, v{b0+r}, v{b0+16+r}")
    for j in range(4):
        E(f"  v_cvt_pk_bf16_f32 v{40+j}, v{32+j}, v{64+j}")
    for j in range(4):
        E(f"  v_lshlrev_b32 v{32+j}, 16, v{40+j}")
        E(f"  v_and_b32 v{64+j}, 0xffff0000, v{40+j}")
    for j in range(4):
        E(f"  v_max_f32 v{32+j}, 0, v{32+j}")
    for j in range(4):
        E(f"  v_mul_f32 v{32+j}, v{32+j}, v{64+j}")
    E("  v_cvt_pk_bf16_f32 v16, v32, v33")
    E("  v_cvt_pk_bf16_f32 v17, v34, v35")
    E("L_t_bst:")
    E("  v_lshlrev_b32 v12, 3, v0")
    E(f"  ds_write_b64 v12, v[16:17] offset:{L_O}")
    E("  s_waitcnt lgkmcnt(0)")
    E("L_t_bdone:")
    E("  s_barrier")
    E("  v_and_b32 v10, 7, v3")
    E("  v_lshlrev_b32 v10, 8, v10")
    E("  v_lshl_add_u32 v10, v4, 4, v10")
    E(f"  s_and_b32 s84, s{SW}, 1")
    E("  s_lshl_b32 s84, s84, 7")
    E("  v_add_u32 v10, s84, v10")
    E(f"  ds_read_b128 v[16:19], v10 offset:{L_O}")
    E(f"  ds_read_b128 v[20:23], v10 offset:{L_O+64}")
    E("  s_waitcnt lgkmcnt(0)")
    for ks in range(2):
        for c in range(8):
            cc = "0" if ks == 0 else f"v[{ACC+4*c}:{ACC+4*c+3}]"
            E(f"  v_mfma_f32_16x16x32_bf16 v[{ACC+4*c}:{ACC+4*c+3}], v[{128+32*ks+4*c}:{128+32*ks+4*c+3}], v[{16+4*ks}:{19+4*ks}], {cc}")
    E("  v_lshlrev_b32 v9, 6, v3")
    E("  v_lshl_add_u32 v9, v4, 4, v9")
    E(f"  s_lshl_b32 s84, s{SW}, 12")
    E("  v_add_u32 v9, s84, v9")
    E("  v_cmp_gt_u32 vcc, 8, v3")
    E(f"  s_and_saveexec_b64 s[{EX}:{EX+1}], vcc")
    E("  s_nop 7")
    for c in range(8):
        E(f"  ds_write_b128 v9, v[{ACC+4*c}:{ACC+4*c+3}] offset:{L_RED+c*512}")
    E(f"  s_mov_b64 exec, s[{EX}:{EX+1}]")
    E("  s_waitcnt lgkmcnt(0)")
    E("  s_barrier")
    E("  v_and_b32 v9, 255, v0")
    E("  v_lshlrev_b32 v9, 4, v9")
    E("  v_lshrrev_b32 v13, 8, v0")
    E("  v_lshl_add_u32 v9, v13, 14, v9")
    for k in range(4):
        E(f"  ds_read_b128 v[{64+4*k}:{64+4*k+3}], v9 offset:{L_RED+k*4096}")
    E("  v_bfe_u32 v10, v0, 5, 3")
    E("  v_bfe_u32 v11, v0, 2, 3")
    E("  v_and_b32 v12, 3, v0")
    E("  v_lshlrev_b32 v11, 11, v11")
    E("  v_lshl_add_u32 v11, v10, 6, v11")
    E("  v_lshl_add_u32 v11, v12, 4, v11")
    E("  v_lshl_add_u32 v11, v13, 10, v11")
    E(f"  s_mov_b32 s84, s{SRID}")
    E(f"  s_cmp_eq_u32 s{SROLE}, 2")
    E("  s_cselect_b32 s85, 32, 0")
    E("  s_add_u32 s84, s84, s85")
    E("  s_lshl_b32 s84, s84, 14")
    E(f"  s_add_u32 s84, s84, 0x{P3:x}")
    E("  s_waitcnt lgkmcnt(0)")
    for r in range(4):
        E(f"  v_add_f32 v{64+r}, v{64+r}, v{68+r}")
        E(f"  v_add_f32 v{72+r}, v{72+r}, v{76+r}")
    E(f"  buffer_store_dwordx4 v[64:67], v11, s[{S_WS}:{S_WS+3}], s84 offen sc1")
    E(f"  buffer_store_dwordx4 v[72:75], v11, s[{S_WS}:{S_WS+3}], s84 offen offset:512 sc1")
    E("  s_waitcnt vmcnt(0)")
    E("  s_barrier")
    E(f"  s_cmp_lg_u32 s{SW}, 0")
    E("  s_cbranch_scc1 L_end")
    E(f"  s_mov_b32 s90, s{SRID}")
    E(f"  s_cmp_eq_u32 s{SROLE}, 2")
    E("  s_cselect_b32 s85, 32, 0")
    E("  s_add_u32 s90, s90, s85")
    set_flag(FLS, 90)
    stamp(10)
    E("  s_branch L_end")
    E("L_final:")
    E(f"  s_cmp_lg_u32 s{SW}, 0")
    E("  s_cbranch_scc1 L_f_wait")
    E("  v_lshlrev_b32 v11, 7, v1")
    E(f"  v_add_u32 v11, 0x{FLS:x}, v11")
    E("  s_mov_b32 s92, 0xffffffff")
    E("  s_mov_b32 s93, 0x00003fff")
    poll_flags(11, 92)
    E("L_f_wait:")
    E("  s_barrier")
    stamp(10)
    E("  v_lshrrev_b32 v10, 5, v0")
    E("  v_and_b32 v11, 31, v0")
    E("  v_lshlrev_b32 v12, 14, v10")
    E("  v_lshl_add_u32 v12, v11, 4, v12")
    E(f"  s_lshl_b32 s84, s{SRID}, 9")
    E(f"  s_add_u32 s84, s84, 0x{P3:x}")
    E(f"  buffer_load_dwordx4 v[64:67], v12, s[{S_WS}:{S_WS+3}], s84 offen sc1")
    E(f"  s_add_u32 s85, s84, {16*16384}")
    E(f"  buffer_load_dwordx4 v[68:71], v12, s[{S_WS}:{S_WS+3}], s85 offen sc1")
    E(f"  s_add_u32 s85, s84, {32*16384}")
    for r in range(4):
        E(f"  v_mov_b32 v{72+r}, 0")
    E("  v_cmp_gt_u32 vcc, 14, v10")
    E(f"  s_and_saveexec_b64 s[{EX}:{EX+1}], vcc")
    E(f"  buffer_load_dwordx4 v[72:75], v12, s[{S_WS}:{S_WS+3}], s85 offen sc1")
    E(f"  s_mov_b64 exec, s[{EX}:{EX+1}]")
    E("  v_lshrrev_b32 v13, 2, v11")
    E("  v_and_b32 v14, 3, v11")
    E("  v_lshl_add_u32 v13, v14, 5, v13")
    E("  v_lshlrev_b32 v13, 1, v13")
    E(f"  s_lshl_b32 s86, s{SRID}, 8")
    for r in range(4):
        E(f"  buffer_load_ushort v{16+r}, v13, s[{S_X}:{S_X+3}], s86 offen offset:{r*16}")
    E("  s_waitcnt vmcnt(0)")
    for r in range(4):
        E(f"  v_add_f32 v{64+r}, v{64+r}, v{68+r}")
    E("  v_lshlrev_b32 v9, 4, v0")
    E(f"  ds_write_b128 v9, v[64:67] offset:{L_RED}")
    E(f"  ds_write_b128 v9, v[72:75] offset:{L_RED+8192}")
    E("  s_waitcnt lgkmcnt(0)")
    E("  s_barrier")
    E(f"  s_cmp_lg_u32 s{SW}, 0")
    E("  s_cbranch_scc1 L_end")
    E("  v_lshrrev_b32 v9, 5, v1")
    E("  v_lshlrev_b32 v9, 13, v9")
    E("  v_lshl_add_u32 v9, v11, 4, v9")
    for k in range(16):
        E(f"  ds_read_b128 v[{64+4*k}:{64+4*k+3}], v9 offset:{L_RED+k*512}")
    E("  s_waitcnt lgkmcnt(0)")
    for st in (1, 2, 4, 8):
        for k in range(0, 16, 2*st):
            for r in range(4):
                E(f"  v_add_f32 v{64+4*k+r}, v{64+4*k+r}, v{64+4*(k+st)+r}")
    E("  v_lshlrev_b32 v8, 2, v1")
    E("  v_xor_b32 v8, 128, v8")
    for r in range(4):
        E(f"  ds_bpermute_b32 v{96+r}, v8, v{64+r}")
    E("  s_waitcnt lgkmcnt(0)")
    for r in range(4):
        E(f"  v_cvt_pk_bf16_f32 v{20+r}, v{64+r}, v{96+r}")
    for r in range(4):
        E(f"  v_lshlrev_b32 v{64+r}, 16, v{20+r}")
        E(f"  v_and_b32 v{96+r}, 0xffff0000, v{20+r}")
    for r in range(4):
        E(f"  v_mul_f32 v{24+r}, 0x{LOG2E ^ 0x80000000:x}, v{96+r}")
    for r in range(4):
        E(f"  v_exp_f32 v{24+r}, v{24+r}")
    E("  s_nop 0")
    for r in range(4):
        E(f"  v_add_f32 v{24+r}, 1.0, v{24+r}")
    for r in range(4):
        E(f"  v_rcp_f32 v{24+r}, v{24+r}")
    E("  s_nop 0")
    for r in range(4):
        E(f"  v_mul_f32 v{24+r}, v{96+r}, v{24+r}")
    for r in range(4):
        E(f"  v_cvt_pk_bf16_f32 v{24+r}, v{24+r}, v{24+r}")
    for r in range(4):
        E(f"  v_lshlrev_b32 v{24+r}, 16, v{24+r}")
    for r in range(4):
        E(f"  v_mul_f32 v{24+r}, v{64+r}, v{24+r}")
    for r in range(4):
        E(f"  v_cvt_pk_bf16_f32 v{24+r}, v{24+r}, v{24+r}")
    for r in range(4):
        E(f"  v_lshlrev_b32 v{24+r}, 16, v{24+r}")
        E(f"  v_lshlrev_b32 v{16+r}, 16, v{16+r}")
    for r in range(4):
        E(f"  v_add_f32 v{24+r}, v{16+r}, v{24+r}")
    for r in range(4):
        E(f"  v_cvt_pk_bf16_f32 v{24+r}, v{24+r}, v{24+r}")
    E("  s_mov_b32 s92, 0xffffffff")
    E("  s_mov_b32 s93, 0")
    E("  s_mov_b64 exec, s[92:93]")
    for r in range(4):
        E(f"  buffer_store_short v{24+r}, v13, s[{S_OUT}:{S_OUT+3}], s86 offen offset:{r*16}")
    E("  s_mov_b64 exec, -1")
    stamp(11)
    E("L_end:")
    stamp(12)
    stamp_dump()
    E("L_end2:")
    E("  s_endpgm")

E(f"; @launch grid=(256,1,1) block=(512,1,1) lds={L_SIZE}")
E('.amdgcn_target "amdgcn-amd-amdhsa--gfx950"')
E(".text")
gen()
E('.section .rodata,"a"')
E(".p2align 6")
E(f".amdhsa_kernel {NAME}_kernel")
E("  .amdhsa_next_free_vgpr 256")
E("  .amdhsa_next_free_sgpr 102")
E("  .amdhsa_accum_offset 256")
E("  .amdhsa_group_segment_fixed_size 0")
E("  .amdhsa_kernarg_size 96")
E("  .amdhsa_user_sgpr_count 2")
E("  .amdhsa_user_sgpr_kernarg_segment_ptr 1")
E("  .amdhsa_system_sgpr_workgroup_id_x 1")
E("  .amdhsa_float_denorm_mode_32 3")
E(".end_amdhsa_kernel")
out = [o for o in out if o is not None]
open(sys.argv[1] if len(sys.argv) > 1 else f"cdna_kernels/{NAME}.s", "w").write("\n".join(out) + "\n")
```

```python
import sys

NAME = "recurrent_scan__gqa_block_cached__glu_gated_reglu__decode"
out = []
def E(s=""):
    out.append(s)

DIAG = len(sys.argv) > 2 and "diag" in sys.argv[2:]

QP = 0x0
FP = 0x100000
OP = 0x200000
ML = 0x280000
P3 = 0x290000
STAMP_BASE = 0x600000
FLQ = 0x380000
FLA = 0x390000
FLS = 0x3a0000
FLG = 0x3b0000
SNON = 91
WS_SIZE = 0x20000000
L_RED = 0
L_ML = 32768
L_Q = 33024
L_O = 34048
L_SIZE = 36096
LOG2E = 0x3FB8AA3B
SCALE = 0x3DB504F3

S_K, S_V, S_WS, S_DBG, S_X, S_W, S_W2, S_OUT = 28, 32, 36, 40, 44, 48, 52, 56
SW, SPAIR, SSPLIT, SB, SKVH = 60, 61, 62, 63, 64
SROLE = 65
ST0, ST1 = 66, 67
SRID = 68
SLO, SHI, SSC, SL2E = 70, 71, 72, 73
SK0, SK1, SV0, SV1 = 74, 75, 76, 77
EX = 80

RING = [64, 96, 128, 160]
TT = 192
ACC = 224
SC = 32
QR = 192
DD = 16
def opt(name, default):
    for a in sys.argv[2:]:
        if a.startswith(name + "="):
            return int(a.split("=")[1])
    return default
NT = {0: "", 1: " nt", 2: " sc1 nt", 3: " sc0 sc1 nt", 4: " sc0 nt", 5: " sc1", 6: " sc0 sc1"}[opt("nt", 1)]
ROT = opt("rot", 1)
SPIN = 100000
NB1 = opt("nb1", 4)

STREGS = [3, 14, 15, 69, 78, 79, 83, 94, 95, 96, 97, 100, 101]
def stamp(i):
    if not DIAG:
        return
    E("  s_memrealtime s[98:99]")
    E("  s_waitcnt lgkmcnt(0)")
    E(f"  s_mov_b32 s{STREGS[i]}, s98")
def stamp_init():
    if not DIAG:
        return
    for r in STREGS:
        E(f"  s_mov_b32 s{r}, 0")
def stamp_dump():
    if not DIAG:
        return
    E("  s_waitcnt vmcnt(0) lgkmcnt(0)")
    E(f"  s_lshl_b32 s98, s2, 3")
    E(f"  s_add_u32 s98, s98, s{SW}")
    E(f"  s_lshl_b32 s98, s98, 7")
    E(f"  s_add_u32 s98, s98, 0x{STAMP_BASE:x}")
    E("  s_mov_b64 exec, 1")
    E("  v_mov_b32 v1, 0")
    for i, r in enumerate(STREGS):
        E(f"  v_mov_b32 v2, s{r}")
        E(f"  buffer_store_dword v2, v1, s[{S_WS}:{S_WS+3}], s98 offen offset:{i*4}")
        E("  s_waitcnt vmcnt(0)")

def srd(d, ptr, size):
    E(f"  s_mov_b32 s{d}, s{ptr}")
    E(f"  s_mov_b32 s{d+1}, s{ptr+1}")
    E(f"  s_mov_b32 s{d+2}, 0x{size:x}")
    E(f"  s_mov_b32 s{d+3}, 0x00020000")

def transpose(S, T):
    for q in range(4):
        for e in range(2):
            c = 2*q+e
            for p in range(4):
                sel = SLO if e == 0 else SHI
                E(f"  v_perm_b32 v{T+4*c+p}, v{S+4*(2*p+1)+q}, v{S+4*(2*p)+q}, s{sel}")

def bperm_xor(dst, src, addr_tmp, lane4, x):
    E(f"  v_xor_b32 v{addr_tmp}, {x*4}, v{lane4}")
    E(f"  ds_bpermute_b32 v{dst}, v{addr_tmp}, v{src}")
    E("  s_waitcnt lgkmcnt(0)")

def adv(s0):
    if ROT:
        E(f"  s_add_u32 s99, s{s0}, 8192")
        E(f"  s_and_b32 s99, s99, 0xffff")
        E(f"  s_and_b32 s{s0}, s{s0}, 0xffff0000")
        E(f"  s_or_b32 s{s0}, s{s0}, s99")
        E(f"  s_add_u32 s{s0+1}, s{s0}, 4096")
    else:
        E(f"  s_add_u32 s{s0}, s{s0}, 8192")
        E(f"  s_add_u32 s{s0+1}, s{s0+1}, 8192")

def issue_tile(idx):
    b = RING[idx % 4]
    if idx < 8:
        for i in range(8):
            E(f"  buffer_load_dwordx4 v[{b+4*i}:{b+4*i+3}], v5, s[{S_K}:{S_K+3}], s{SK0+(i>>2)} offen offset:{(i&3)*1024}{NT}")
        adv(SK0)
    else:
        for i in range(8):
            E(f"  buffer_load_dwordx4 v[{b+4*i}:{b+4*i+3}], v6, s[{S_V}:{S_V+3}], s{SV0+(i>>2)} offen offset:{(i&3)*1024}{NT}")
        adv(SV0)

def issue_tailw(j):
    b = RING[j]
    s = ST0 + j
    for i in range(8):
        E(f"  buffer_load_dwordx4 v[{b+4*i}:{b+4*i+3}], v7, s[{S_W}:{S_W+3}], s{s} offen")
        if i < 7:
            E(f"  s_add_u32 s{s}, s{s}, 8192")

lbl = [0]
def poll_flags(vaddr, active_sgpr_pair):
    lbl[0] += 1
    L = f"L_poll{lbl[0]}"
    E(f"  s_mov_b32 s82, {SPIN}")
    E(f"  buffer_load_dword v8, v{vaddr}, s[{S_WS}:{S_WS+3}], 0 offen sc1")
    E(f"{L}:")
    E("  s_sleep 1")
    E(f"  buffer_load_dword v9, v{vaddr}, s[{S_WS}:{S_WS+3}], 0 offen sc1")
    E("  s_waitcnt vmcnt(1)")
    E(f"  v_cmp_ne_u32 vcc, s{SNON}, v8")
    E(f"  s_and_b64 vcc, vcc, s[{active_sgpr_pair}:{active_sgpr_pair+1}]")
    E(f"  s_cbranch_scc0 {L}_done")
    E("  s_sleep 1")
    E(f"  buffer_load_dword v8, v{vaddr}, s[{S_WS}:{S_WS+3}], 0 offen sc1")
    E("  s_waitcnt vmcnt(1)")
    E(f"  v_cmp_ne_u32 vcc, s{SNON}, v9")
    E(f"  s_and_b64 vcc, vcc, s[{active_sgpr_pair}:{active_sgpr_pair+1}]")
    E(f"  s_cbranch_scc0 {L}_done")
    E("  s_sub_u32 s82, s82, 1")
    E("  s_cmp_eq_u32 s82, 0")
    E(f"  s_cbranch_scc0 {L}")
    E(f"{L}_done:")
    E("  s_waitcnt vmcnt(0)")

def set_flag(base, idx_sgpr):
    E(f"  s_lshl_b32 s89, s{idx_sgpr}, 7")
    E(f"  s_add_u32 s89, s89, 0x{base:x}")
    E("  v_mov_b32 v8, s89")
    E(f"  v_mov_b32 v9, s{SNON}")
    E(f"  s_mov_b64 s[{EX}:{EX+1}], exec")
    E("  s_mov_b64 exec, 1")
    E(f"  buffer_store_dword v9, v8, s[{S_WS}:{S_WS+3}], 0 offen sc1")
    E(f"  s_mov_b64 exec, s[{EX}:{EX+1}]")

def gen():
    K = NAME + "_kernel"
    E(f".globl {K}")
    E(".p2align 8")
    E(f".type {K},@function")
    E(f"{K}:")
    E("  s_cmp_ge_u32 s2, 256")
    E("  s_cbranch_scc1 L_end2")
    E("  s_load_dwordx16 s[4:19], s[0:1], 0")
    E("  s_load_dwordx8 s[20:27], s[0:1], 64")
    E("  v_and_b32 v1, 63, v0")
    E("  v_lshrrev_b32 v2, 6, v0")
    E("  v_and_b32 v3, 15, v1")
    E("  v_lshrrev_b32 v4, 4, v1")
    E(f"  v_readfirstlane_b32 s{SW}, v2")
    E(f"  s_lshr_b32 s{SPAIR}, s2, 2")
    E(f"  s_and_b32 s{SSPLIT}, s2, 3")
    E(f"  s_lshr_b32 s{SB}, s{SPAIR}, 3")
    E(f"  s_and_b32 s{SKVH}, s{SPAIR}, 7")
    E(f"  s_mov_b32 s{SLO}, 0x05040100")
    E(f"  s_mov_b32 s{SHI}, 0x07060302")
    E(f"  s_mov_b32 s{SSC}, 0x{SCALE:x}")
    E(f"  s_mov_b32 s{SL2E}, 0x{LOG2E:x}")
    E("  v_lshlrev_b32 v5, 6, v3")
    E("  v_lshl_add_u32 v5, v4, 4, v5")
    E("  v_lshlrev_b32 v6, 8, v4")
    E("  v_lshl_add_u32 v6, v3, 4, v6")
    E(f"  s_lshl_b32 s{SK0}, s{SPAIR}, 21")
    E(f"  s_lshl_b32 s84, s{SSPLIT}, 19")
    E(f"  s_add_u32 s{SK0}, s{SK0}, s84")
    E(f"  s_lshl_b32 s84, s{SW}, 16")
    E(f"  s_add_u32 s{SK0}, s{SK0}, s84")
    if ROT:
        E(f"  s_lshr_b32 s84, s2, 2")
        E(f"  s_add_u32 s84, s84, s2")
        E(f"  s_add_u32 s84, s84, s{SW}")
        E(f"  s_and_b32 s84, s84, 7")
        E(f"  s_lshl_b32 s84, s84, 13")
        E(f"  s_add_u32 s{SK0}, s{SK0}, s84")
    E(f"  s_add_u32 s{SK1}, s{SK0}, 4096")
    E(f"  s_mov_b32 s{SV0}, s{SK0}")
    E(f"  s_mov_b32 s{SV1}, s{SK1}")
    E("  s_waitcnt lgkmcnt(0)")
    srd(S_K, 6, 0x8000000)
    srd(S_V, 8, 0x8000000)
    srd(S_WS, 26, WS_SIZE)
    srd(S_DBG, 24, 256)
    srd(S_X, 4, 8192)
    srd(S_OUT, 22, 8192)
    stamp_init()
    stamp(0)
    E(f"  s_cmp_eq_u32 s{SW}, 0")
    E("  s_cbranch_scc1 L_helper")
    E("  s_barrier")
    for idx in range(NB1):
        issue_tile(idx)
    E("  s_branch L_join")
    E("L_helper:")
    E("  v_mov_b32 v8, 0")
    E("  s_cmp_lg_u32 s2, 0")
    E("  s_cbranch_scc1 L_h_nonon")
    E("  s_memrealtime s[98:99]")
    E("  s_waitcnt lgkmcnt(0)")
    E("  s_or_b32 s98, s98, 1")
    E("  v_mov_b32 v2, s98")
    E(f"  s_mov_b64 s[{EX}:{EX+1}], exec")
    E("  s_mov_b64 exec, 1")
    E(f"  buffer_store_dword v2, v8, s[{S_DBG}:{S_DBG+3}], 0 offen sc1")
    E(f"  s_mov_b64 exec, s[{EX}:{EX+1}]")
    E("  s_branch L_h_non2")
    E("L_h_nonon:")
    E("  v_mov_b32 v2, 0")
    E("L_h_non2:")
    E("  s_and_b32 s84, s2, 7")
    E("  s_lshr_b32 s85, s2, 3")
    srd(S_W, 10, 512*8192)
    E("  s_cmp_lt_u32 s85, 14")
    E("  s_cselect_b32 s86, s16, s18")
    E("  s_cselect_b32 s87, s17, s19")
    E("  s_cselect_b32 s88, 0, 14")
    E("  s_sub_u32 s88, s85, s88")
    E(f"  s_mov_b32 s{S_W2}, s86")
    E(f"  s_mov_b32 s{S_W2+1}, s87")
    E(f"  s_mov_b32 s{S_W2+2}, 0x{512*3584:x}")
    E(f"  s_mov_b32 s{S_W2+3}, 0x00020000")
    E("  s_cmp_lt_u32 s2, 224")
    E("  s_cbranch_scc1 L_h_guok")
    E(f"  s_mov_b32 s{S_W2+2}, 0")
    E("L_h_guok:")
    E("  v_and_b32 v8, 7, v1")
    E("  v_lshrrev_b32 v9, 3, v1")
    E("  v_lshlrev_b32 v8, 10, v8")
    E("  v_lshl_add_u32 v8, v9, 7, v8")
    for i in range(8):
        E(f"  buffer_load_dwordx4 v[{96+4*i}:{96+4*i+3}], v8, s[{S_X}:{S_X+3}], 0 offen offset:{16*i}")
    E("  v_and_b32 v9, 7, v3")
    E("  v_lshlrev_b32 v9, 10, v9")
    E("  v_lshl_add_u32 v9, v4, 4, v9")
    E("  s_lshl_b32 s89, s84, 7")
    E(f"  buffer_load_dwordx4 v[24:27], v9, s[{S_X}:{S_X+3}], s89 offen")
    E(f"  buffer_load_dwordx4 v[28:31], v9, s[{S_X}:{S_X+3}], s89 offen offset:64")
    E("  v_lshlrev_b32 v10, 16, v4")
    E("  v_lshl_add_u32 v10, v3, 4, v10")
    E("  s_lshl_b32 s89, s84, 19")
    E("  s_lshl_b32 s90, s85, 8")
    E("  s_add_u32 s89, s89, s90")
    for ks in range(2):
        for i in range(8):
            r = 192 + 32*ks + 4*i
            E(f"  buffer_load_dwordx4 v[{r}:{r+3}], v10, s[{S_W}:{S_W+3}], s89 offen")
            E(f"  s_add_u32 s89, s89, {8192 if i < 7 else 8192*25}")
    E("  s_movk_i32 s90, 3584*8")
    E("  v_mul_lo_u32 v11, v4, s90")
    E("  v_lshl_add_u32 v11, v3, 4, v11")
    E("  s_mul_i32 s89, s84, 64*3584")
    E("  s_lshl_b32 s90, s88, 8")
    E("  s_add_u32 s89, s89, s90")
    for ks in range(2):
        for i in range(8):
            r = 32 + 32*ks + 4*i
            E(f"  buffer_load_dwordx4 v[{r}:{r+3}], v11, s[{S_W2}:{S_W2+3}], s89 offen")
            E(f"  s_add_u32 s89, s89, {3584 if i < 7 else 3584*25}")
    E("  s_barrier")
    E("  v_lshlrev_b32 v8, 2, v1")
    E("  s_waitcnt vmcnt(34)")
    for i in range(32):
        E(f"  v_lshlrev_b32 v{128+2*i}, 16, v{96+i}")
        E(f"  v_and_b32 v{129+2*i}, 0xffff0000, v{96+i}")
    for k in range(4):
        E(f"  v_add_f32 v{12+k}, v{128+k}, v{132+k}")
    for i in range(8, 64, 4):
        for k in range(4):
            E(f"  v_add_f32 v{12+k}, v{12+k}, v{128+i+k}")
    E("  v_add_f32 v12, v12, v13")
    E("  v_add_f32 v14, v14, v15")
    E("  v_add_f32 v12, v12, v14")
    for x in (8, 16, 32):
        bperm_xor(13, 12, 9, 8, x)
        E("  v_add_f32 v12, v12, v13")
    E("  v_mul_f32 v12, 0x3b000000, v12")
    for k in range(4):
        E(f"  v_mov_b32 v{96+k}, 0")
    for i in range(0, 64, 4):
        for k in range(4):
            E(f"  v_sub_f32 v{100+k}, v{128+i+k}, v12")
        for k in range(4):
            E(f"  v_fmac_f32 v{96+k}, v{100+k}, v{100+k}")
    E("  v_add_f32 v96, v96, v97")
    E("  v_add_f32 v98, v98, v99")
    E("  v_add_f32 v14, v96, v98")
    for x in (8, 16, 32):
        bperm_xor(13, 14, 9, 8, x)
        E("  v_add_f32 v14, v14, v13")
    E("  v_mul_f32 v14, 0x3b000000, v14")
    E("  v_cvt_pk_bf16_f32 v13, v12, v14")
    E("  v_lshlrev_b32 v12, 16, v13")
    E("  v_and_b32 v14, 0xffff0000, v13")
    E("  v_add_f32 v14, 0x3727c5ac, v14")
    E("  v_cvt_pk_bf16_f32 v13, v14, v14")
    E("  v_lshlrev_b32 v14, 16, v13")
    E("  v_sqrt_f32 v14, v14")
    E("  s_nop 0")
    E("  v_cvt_pk_bf16_f32 v13, v14, v14")
    E("  v_lshlrev_b32 v14, 16, v13")
    E("  v_rcp_f32 v15, v14")
    E("  s_waitcnt vmcnt(32)")
    for i in range(8):
        E(f"  v_lshlrev_b32 v{96+2*i}, 16, v{24+i}")
        E(f"  v_and_b32 v{97+2*i}, 0xffff0000, v{24+i}")
    for i in range(16):
        E(f"  v_sub_f32 v{96+i}, v{96+i}, v12")
    for i in range(8):
        E(f"  v_cvt_pk_bf16_f32 v{24+i}, v{96+2*i}, v{97+2*i}")
    for i in range(8):
        E(f"  v_lshlrev_b32 v{96+2*i}, 16, v{24+i}")
        E(f"  v_and_b32 v{97+2*i}, 0xffff0000, v{24+i}")
    for i in range(16):
        E(f"  v_mul_f32 v{112+i}, v{96+i}, v15")
    for i in range(16):
        E(f"  v_fma_f32 v{128+i}, -v{112+i}, v14, v{96+i}")
    for i in range(16):
        E(f"  v_fma_f32 v{112+i}, v{128+i}, v15, v{112+i}")
    for i in range(8):
        E(f"  v_cvt_pk_bf16_f32 v{16+i}, v{112+2*i}, v{113+2*i}")
    E("  v_lshlrev_b32 v12, 9, v3")
    E("  v_lshl_add_u32 v12, v4, 4, v12")
    E("  v_cmp_gt_u32 vcc, 8, v3")
    E("  s_mov_b64 s[92:93], vcc")
    stamp(1)
    E("  s_waitcnt vmcnt(16)")
    for ks in range(2):
        transpose(192 + 32*ks, 128)
        E("  s_nop 1")
        for c in range(8):
            cc = "0" if ks == 0 else f"v[{160+4*c}:{160+4*c+3}]"
            E(f"  v_mfma_f32_16x16x32_bf16 v[{160+4*c}:{160+4*c+3}], v[{128+4*c}:{128+4*c+3}], v[{16+4*ks}:{19+4*ks}], {cc}")
    E("  s_lshl_b32 s89, s84, 5")
    E("  s_add_u32 s89, s89, s85")
    E("  s_lshl_b32 s89, s89, 12")
    E(f"  s_mov_b64 s[{EX}:{EX+1}], exec")
    E("  s_mov_b64 exec, s[92:93]")
    E("  s_nop 4")
    for c in range(8):
        E(f"  buffer_store_dwordx4 v[{160+4*c}:{160+4*c+3}], v12, s[{S_WS}:{S_WS+3}], s89 offen offset:{c*64} sc1")
    E(f"  s_mov_b64 exec, s[{EX}:{EX+1}]")
    E("  s_waitcnt vmcnt(8)")
    for ks in range(2):
        transpose(32 + 32*ks, 128)
        E("  s_nop 1")
        for c in range(8):
            cc = "0" if ks == 0 else f"v[{192+4*c}:{192+4*c+3}]"
            E(f"  v_mfma_f32_16x16x32_bf16 v[{192+4*c}:{192+4*c+3}], v[{128+4*c}:{128+4*c+3}], v[{16+4*ks}:{19+4*ks}], {cc}")
    stamp(2)
    E(f"  v_readfirstlane_b32 s{SNON}, v2")
    E("  s_nop 3")
    E(f"  s_cmp_lg_u32 s{SNON}, 0")
    E("  s_cbranch_scc1 L_h_non_done")
    E("  v_mov_b32 v8, 0")
    E(f"  s_mov_b32 s82, {SPIN}")
    E("L_h_non:")
    E(f"  buffer_load_dword v9, v8, s[{S_DBG}:{S_DBG+3}], 0 offen sc1")
    E("  s_waitcnt vmcnt(0)")
    E(f"  v_readfirstlane_b32 s{SNON}, v9")
    E("  s_nop 3")
    E(f"  s_cmp_lg_u32 s{SNON}, 0")
    E("  s_cbranch_scc1 L_h_non_done")
    E("  s_sleep 1")
    E("  s_sub_u32 s82, s82, 1")
    E("  s_cmp_eq_u32 s82, 0")
    E("  s_cbranch_scc0 L_h_non")
    E("L_h_non_done:")
    E("  s_waitcnt vmcnt(0)")
    set_flag(FLQ, 2)
    E("  s_cmp_ge_u32 s2, 224")
    E("  s_cbranch_scc1 L_h_nogu")
    E("  s_mul_i32 s89, s84, 28")
    E("  s_add_u32 s89, s89, s85")
    E("  s_lshl_b32 s89, s89, 12")
    E(f"  s_add_u32 s89, s89, 0x{FP:x}")
    E(f"  s_mov_b64 s[{EX}:{EX+1}], exec")
    E("  s_mov_b64 exec, s[92:93]")
    for c in range(8):
        E(f"  buffer_store_dwordx4 v[{192+4*c}:{192+4*c+3}], v12, s[{S_WS}:{S_WS+3}], s89 offen offset:{c*64} sc1")
    E(f"  s_mov_b64 exec, s[{EX}:{EX+1}]")
    E("L_h_nogu:")
    stamp(3)
    E("  v_and_b32 v11, 31, v1")
    E(f"  s_lshl_b32 s89, s{SKVH}, 5")
    E("  v_add_u32 v11, s89, v11")
    E("  v_lshlrev_b32 v11, 7, v11")
    E(f"  v_add_u32 v11, 0x{FLQ:x}, v11")
    E("  s_mov_b64 s[92:93], exec")
    poll_flags(11, 92)
    stamp(4)
    E("  v_lshrrev_b32 v10, 5, v1")
    E("  v_and_b32 v11, 31, v1")
    E("  v_lshlrev_b32 v12, 12, v10")
    E("  v_lshl_add_u32 v12, v11, 4, v12")
    E(f"  s_lshl_b32 s89, s{SKVH}, 14")
    E(f"  s_lshl_b32 s90, s{SB}, 9")
    E("  s_add_u32 s89, s89, s90")
    E("  s_add_u32 s90, s89, 8192")
    for kc in range(8):
        E(f"  buffer_load_dwordx4 v[{64+4*kc}:{64+4*kc+3}], v12, s[{S_WS}:{S_WS+3}], s89 offen sc1")
        E(f"  buffer_load_dwordx4 v[{96+4*kc}:{96+4*kc+3}], v12, s[{S_WS}:{S_WS+3}], s90 offen sc1")
        if kc < 7:
            E("  s_add_u32 s89, s89, 131072")
            E("  s_add_u32 s90, s90, 131072")
    E("  v_and_b32 v13, 3, v11")
    E("  v_lshrrev_b32 v14, 2, v11")
    E("  v_lshlrev_b32 v13, 5, v13")
    E("  v_add_u32 v13, v13, v14")
    E("  v_lshl_add_u32 v13, v10, 7, v13")
    E("  v_lshlrev_b32 v13, 1, v13")
    E("  s_waitcnt vmcnt(0)")
    set_flag(FLG, 2)
    for half in range(2):
        b0 = 64 + 32*half
        for r in range(4):
            E(f"  v_add_f32 v{b0+r}, v{b0+r}, v{b0+4+r}")
            E(f"  v_add_f32 v{b0+8+r}, v{b0+8+r}, v{b0+12+r}")
            E(f"  v_add_f32 v{b0+16+r}, v{b0+16+r}, v{b0+20+r}")
            E(f"  v_add_f32 v{b0+24+r}, v{b0+24+r}, v{b0+28+r}")
        for r in range(4):
            E(f"  v_add_f32 v{b0+r}, v{b0+r}, v{b0+8+r}")
            E(f"  v_add_f32 v{b0+16+r}, v{b0+16+r}, v{b0+24+r}")
        for r in range(4):
            E(f"  v_add_f32 v{b0+r}, v{b0+r}, v{b0+16+r}")
        E(f"  v_cvt_pk_bf16_f32 v{b0+4}, v{b0}, v{b0+1}")
        E(f"  v_cvt_pk_bf16_f32 v{b0+5}, v{b0+2}, v{b0+3}")
        E(f"  ds_write_b16 v13, v{b0+4} offset:{L_Q+half*512}")
        E(f"  ds_write_b16_d16_hi v13, v{b0+4} offset:{L_Q+half*512+16}")
        E(f"  ds_write_b16 v13, v{b0+5} offset:{L_Q+half*512+32}")
        E(f"  ds_write_b16_d16_hi v13, v{b0+5} offset:{L_Q+half*512+48}")
    E("  s_waitcnt lgkmcnt(0)")
    for idx in range(NB1):
        issue_tile(idx)
    E("L_join:")
    E(f"  s_mov_b32 s{SROLE}, 0")
    E(f"  s_mov_b32 s{ST0}, 0")
    E(f"  s_mov_b32 s{ST1}, 0")
    E(f"  s_lshr_b32 s{SRID}, s2, 3")
    E("  s_and_b32 s84, s2, 7")
    E(f"  s_sub_u32 s85, s84, s{SRID}")
    E("  s_and_b32 s85, s85, 7")
    srd(S_W, 12, 4096*1024)
    E("  s_cmp_eq_u32 s85, 0")
    E("  s_cbranch_scc1 L_role_wo")
    E("  s_cmp_eq_u32 s85, 5")
    E("  s_cbranch_scc1 L_role_fin")
    E("  s_cmp_lg_u32 s85, 3")
    E("  s_cbranch_scc1 L_norole")
    E(f"  s_cmp_ge_u32 s{SRID}, 14")
    E("  s_cbranch_scc1 L_norole")
    srd(S_W, 20, 1792*1024)
    E(f"  s_mov_b32 s{SROLE}, 2")
    E("  s_branch L_role_w")
    E("L_role_wo:")
    E(f"  s_mov_b32 s{SROLE}, 1")
    E("L_role_w:")
    E(f"  s_lshl_b32 s84, s{SRID}, 7")
    E(f"  s_and_b32 s85, s{SW}, 1")
    E("  s_lshl_b32 s85, s85, 2")
    E("  s_add_u32 s84, s84, s85")
    E("  s_lshl_b32 s84, s84, 10")
    E(f"  s_lshr_b32 s85, s{SW}, 1")
    E("  s_lshl_b32 s85, s85, 8")
    E(f"  s_add_u32 s{ST0}, s84, s85")
    E(f"  s_add_u32 s{ST1}, s{ST0}, 2048")
    E("  s_branch L_roledone")
    E("L_role_fin:")
    E(f"  s_mov_b32 s{SROLE}, 3")
    E("L_norole:")
    E(f"  s_mov_b32 s{S_W+2}, 0")
    E("L_roledone:")
    E("  v_and_b32 v7, 1, v4")
    E("  v_lshlrev_b32 v7, 6, v7")
    E("  v_lshrrev_b32 v8, 1, v4")
    E("  v_add_u32 v7, v7, v8")
    E("  v_lshlrev_b32 v7, 10, v7")
    E("  v_lshl_add_u32 v7, v3, 4, v7")
    E("  s_barrier")
    stamp(5)
    for idx in range(NB1, 4):
        issue_tile(idx)
    E("  v_and_b32 v9, 3, v3")
    E("  v_lshlrev_b32 v9, 8, v9")
    E("  v_lshrrev_b32 v10, 2, v3")
    E("  v_lshl_add_u32 v9, v10, 6, v9")
    E("  v_lshl_add_u32 v9, v4, 4, v9")
    E(f"  ds_read_b128 v[{QR}:{QR+3}], v9 offset:{L_Q}")
    E("  v_mov_b32 v12, 0xff800000")
    E("  s_waitcnt lgkmcnt(0)")
    DR = [16, 20, 24, 28, 196, 200, 204, 208]
    SS = 212
    for idx in range(8):
        b = RING[idx % 4]
        E("  s_waitcnt vmcnt(24)")
        for i in range(8):
            E(f"  v_mfma_f32_16x16x32_bf16 v[{DR[i]}:{DR[i]+3}], v[{b+4*i}:{b+4*i+3}], v[{QR}:{QR+3}], 0")
        issue_tile(idx+4)
        for i in range(8):
            E(f"  v_add_f32_dpp v{SS+i}, v{DR[i]+1}, v{DR[i]} row_shl:4 row_mask:0xf bank_mask:0xf bound_ctrl:0")
        for i in range(8):
            E(f"  v_add_f32_dpp v{SS+i}, v{DR[i]+2}, v{SS+i} row_shl:8 row_mask:0xf bank_mask:0xf bound_ctrl:0")
        for i in range(8):
            E(f"  v_add_f32_dpp v{SS+i}, v{DR[i]+3}, v{SS+i} row_shl:12 row_mask:0xf bank_mask:0xf bound_ctrl:0")
        for p in range(4):
            E(f"  v_cvt_pk_bf16_f32 v{16+p}, v{SS+2*p}, v{SS+2*p+1}")
        for p in range(4):
            E(f"  v_lshlrev_b32 v{SS+2*p}, 16, v{16+p}")
            E(f"  v_and_b32 v{SS+2*p+1}, 0xffff0000, v{16+p}")
        for k in range(8):
            E(f"  v_mul_f32 v{SS+k}, s{SSC}, v{SS+k}")
        for p in range(4):
            E(f"  v_cvt_pk_bf16_f32 v{SC+4*idx+p}, v{SS+2*p}, v{SS+2*p+1}")
        for p in range(4):
            E(f"  v_max3_f32 v12, v{SS+2*p}, v{SS+2*p+1}, v12")
    E("  v_lshlrev_b32 v8, 2, v1")
    for x in (16, 32):
        bperm_xor(13, 12, 9, 8, x)
        E("  v_max_f32 v12, v12, v13")
    E("  v_cvt_pk_bf16_f32 v13, v12, v12")
    E("  v_lshlrev_b32 v12, 16, v13")
    E(f"  v_mul_f32 v13, s{SL2E}, v12")
    E("  v_mov_b32 v14, 0")
    E("  v_mov_b32 v15, 0")
    stamp(6)
    for idx in range(8, 16):
        j = idx - 8
        b = RING[idx % 4]
        E(f"  ; ---- V tile {j}")
        for p in range(4):
            E(f"  v_lshlrev_b32 v{DD+2*p}, 16, v{SC+4*j+p}")
            E(f"  v_and_b32 v{DD+2*p+1}, 0xffff0000, v{SC+4*j+p}")
        for k in range(8):
            E(f"  v_fma_f32 v{DD+k}, v{DD+k}, s{SL2E}, -v13")
        for k in range(8):
            E(f"  v_exp_f32 v{DD+k}, v{DD+k}")
        E("  s_nop 0")
        for p in range(4):
            E(f"  v_cvt_pk_bf16_f32 v{24+p}, v{DD+2*p}, v{DD+2*p+1}")
        for p in range(4):
            E(f"  v_add_f32 v14, v14, v{DD+2*p}")
            E(f"  v_add_f32 v15, v15, v{DD+2*p+1}")
        n_tiles = min(3, 15 - idx)
        n_tw = max(0, min(2, idx - 12))
        E(f"  s_waitcnt vmcnt({(n_tiles + n_tw) * 8})")
        transpose(b, TT)
        E("  s_nop 1")
        for c in range(8):
            cc = "0" if j == 0 else f"v[{ACC+4*c}:{ACC+4*c+3}]"
            E(f"  v_mfma_f32_16x16x32_bf16 v[{ACC+4*c}:{ACC+4*c+3}], v[{TT+4*c}:{TT+4*c+3}], v[24:27], {cc}")
        if idx + 4 < 16:
            issue_tile(idx+4)
        elif idx in (12, 13):
            issue_tailw(idx - 12)
    stamp(7)
    E("  v_add_f32 v14, v14, v15")
    for x in (16, 32):
        bperm_xor(15, 14, 9, 8, x)
        E("  v_add_f32 v14, v14, v15")
    E("  v_lshlrev_b32 v9, 6, v3")
    E("  v_lshl_add_u32 v9, v4, 4, v9")
    E(f"  s_lshl_b32 s84, s{SW}, 11")
    E("  v_add_u32 v9, s84, v9")
    E("  v_lshlrev_b32 v10, 3, v3")
    E(f"  s_lshl_b32 s84, s{SW}, 5")
    E("  v_add_u32 v10, s84, v10")
    E("  v_mov_b32 v13, v14")
    E("  v_cmp_gt_u32 vcc, 4, v3")
    E(f"  s_and_saveexec_b64 s[{EX}:{EX+1}], vcc")
    for c in range(8):
        E(f"  ds_write_b128 v9, v[{ACC+4*c}:{ACC+4*c+3}] offset:{L_RED+c*256}")
    E(f"  ds_write_b64 v10, v[12:13] offset:{L_ML}")
    E(f"  s_mov_b64 exec, s[{EX}:{EX+1}]")
    E("  s_waitcnt lgkmcnt(0)")
    E("  s_barrier")
    E(f"  s_cmp_ge_u32 s{SW}, 2")
    E("  s_cbranch_scc1 L_comb_done")
    E("  v_lshrrev_b32 v10, 5, v0")
    E("  v_bfe_u32 v11, v0, 2, 3")
    E("  v_and_b32 v9, 3, v0")
    E("  v_lshlrev_b32 v9, 4, v9")
    E("  v_lshl_add_u32 v9, v10, 6, v9")
    E("  v_lshl_add_u32 v9, v11, 8, v9")
    for w in range(8):
        E(f"  ds_read_b128 v[{192+4*w}:{192+4*w+3}], v9 offset:{L_RED+w*2048}")
    E("  v_lshlrev_b32 v11, 3, v10")
    for w in range(8):
        E(f"  ds_read_b64 v[{32+2*w}:{33+2*w}], v11 offset:{L_ML+w*32}")
    E("  s_waitcnt lgkmcnt(0)")
    E("  v_max3_f32 v12, v32, v34, v36")
    E("  v_max3_f32 v12, v12, v38, v40")
    E("  v_max3_f32 v12, v12, v42, v44")
    E("  v_max_f32 v12, v12, v46")
    for w in range(8):
        E(f"  v_sub_f32 v{48+w}, v{32+2*w}, v12")
    for w in range(8):
        E(f"  v_mul_f32 v{48+w}, s{SL2E}, v{48+w}")
    for w in range(8):
        E(f"  v_exp_f32 v{48+w}, v{48+w}")
    E("  s_nop 0")
    for r in range(4):
        E(f"  v_mul_f32 v{16+r}, v48, v{192+r}")
    E("  v_mul_f32 v13, v48, v33")
    for w in range(1, 8):
        for r in range(4):
            E(f"  v_fmac_f32 v{16+r}, v{48+w}, v{192+4*w+r}")
        E(f"  v_fmac_f32 v13, v{48+w}, v{33+2*w}")
    E("  v_lshlrev_b32 v9, 4, v0")
    E("  s_lshl_b32 s84, s2, 11")
    E(f"  s_add_u32 s84, s84, 0x{OP:x}")
    E(f"  buffer_store_dwordx4 v[16:19], v9, s[{S_WS}:{S_WS+3}], s84 offen sc1")
    E("  v_and_b32 v9, 31, v0")
    E("  v_cmp_eq_u32 vcc, 0, v9")
    E("  s_lshl_b32 s84, s2, 5")
    E(f"  s_add_u32 s84, s84, 0x{ML:x}")
    E(f"  s_and_saveexec_b64 s[{EX}:{EX+1}], vcc")
    E(f"  buffer_store_dwordx2 v[12:13], v11, s[{S_WS}:{S_WS+3}], s84 offen sc1")
    E(f"  s_mov_b64 exec, s[{EX}:{EX+1}]")
    E("  s_waitcnt vmcnt(0)")
    E("L_comb_done:")
    E("  s_barrier")
    E(f"  s_cmp_lg_u32 s{SW}, 0")
    E("  s_cbranch_scc1 L_noflag")
    set_flag(FLA, 2)
    E("L_noflag:")
    stamp(8)
    E(f"  s_cmp_eq_u32 s{SROLE}, 0")
    E("  s_cbranch_scc1 L_end")
    E(f"  s_cmp_eq_u32 s{SROLE}, 3")
    E("  s_cbranch_scc1 L_final")
    E("  s_waitcnt vmcnt(0)")
    transpose(RING[0], 128)
    transpose(RING[1], 160)
    E(f"  s_cmp_lg_u32 s{SW}, 0")
    E("  s_cbranch_scc1 L_t_wait")
    E(f"  s_cmp_eq_u32 s{SROLE}, 2")
    E("  s_cbranch_scc1 L_t_pollf")
    E("  v_bfe_u32 v11, v1, 2, 3")
    E("  v_lshlrev_b32 v11, 5, v11")
    E("  v_and_b32 v12, 3, v1")
    E("  v_add_u32 v11, v11, v12")
    E(f"  s_lshr_b32 s89, s{SRID}, 2")
    E("  s_lshl_b32 s89, s89, 2")
    E("  v_add_u32 v11, s89, v11")
    E("  v_lshlrev_b32 v11, 7, v11")
    E(f"  v_add_u32 v11, 0x{FLA:x}, v11")
    E("  s_mov_b64 s[92:93], exec")
    poll_flags(11, 92)
    E("  s_branch L_t_wait")
    E("L_t_pollf:")
    E("  v_lshlrev_b32 v11, 7, v1")
    E(f"  v_add_u32 v11, 0x{FLG:x}, v11")
    E("  s_mov_b64 s[92:93], exec")
    for j in range(4):
        if j == 3:
            E("  s_mov_b32 s93, 0")
        poll_flags(11, 92)
        if j < 3:
            E(f"  v_add_u32 v11, {64*128}, v11")
    E("L_t_wait:")
    E("  s_barrier")
    stamp(9)
    E(f"  s_cmp_ge_u32 s{SW}, 4")
    E("  s_cbranch_scc1 L_t_bdone")
    E("  v_lshrrev_b32 v10, 5, v0")
    E("  v_and_b32 v11, 31, v0")
    E(f"  s_cmp_eq_u32 s{SROLE}, 2")
    E("  s_cbranch_scc1 L_t_down")
    E("  v_lshlrev_b32 v12, 16, v10")
    E("  v_lshl_add_u32 v12, v11, 4, v12")
    E(f"  s_lshr_b32 s84, s{SRID}, 2")
    E(f"  s_and_b32 s85, s{SRID}, 3")
    E("  s_lshl_b32 s86, s84, 13")
    E("  s_lshl_b32 s87, s85, 9")
    E("  s_add_u32 s86, s86, s87")
    E(f"  s_add_u32 s86, s86, 0x{OP:x}")
    for s in range(4):
        E(f"  buffer_load_dwordx4 v[{64+4*s}:{64+4*s+3}], v12, s[{S_WS}:{S_WS+3}], s86 offen offset:{s*2048} sc1") if s < 2 else None
    E("  s_add_u32 s86, s86, 4096")
    for s in range(2, 4):
        E(f"  buffer_load_dwordx4 v[{64+4*s}:{64+4*s+3}], v12, s[{S_WS}:{S_WS+3}], s86 offen offset:{(s-2)*2048} sc1")
    E("  v_lshlrev_b32 v12, 10, v10")
    E("  s_lshl_b32 s86, s84, 7")
    E("  s_lshl_b32 s87, s85, 3")
    E("  s_add_u32 s86, s86, s87")
    E(f"  s_add_u32 s86, s86, 0x{ML:x}")
    for s in range(4):
        E(f"  buffer_load_dwordx2 v[{32+2*s}:{33+2*s}], v12, s[{S_WS}:{S_WS+3}], s86 offen offset:{s*32} sc1")
    E("  s_waitcnt vmcnt(0)")
    E("  v_max3_f32 v12, v32, v34, v36")
    E("  v_max_f32 v12, v12, v38")
    for s in range(4):
        E(f"  v_sub_f32 v{40+s}, v{32+2*s}, v12")
    for s in range(4):
        E(f"  v_mul_f32 v{40+s}, s{SL2E}, v{40+s}")
    for s in range(4):
        E(f"  v_exp_f32 v{40+s}, v{40+s}")
    E("  s_nop 0")
    E("  v_mul_f32 v13, v40, v33")
    for s in range(1, 4):
        E(f"  v_fmac_f32 v13, v{40+s}, v{33+2*s}")
    for j in range(4):
        E(f"  v_mul_f32 v{44+j}, v40, v{64+j}")
    for s in range(1, 4):
        for j in range(4):
            E(f"  v_fmac_f32 v{44+j}, v{40+s}, v{64+4*s+j}")
    E("  v_rcp_f32 v12, v13")
    E("  s_nop 0")
    for j in range(4):
        E(f"  v_mul_f32 v{64+j}, v{44+j}, v12")
    for j in range(4):
        E(f"  v_fma_f32 v{80+j}, -v{64+j}, v13, v{44+j}")
    for j in range(4):
        E(f"  v_fma_f32 v{64+j}, v{80+j}, v12, v{64+j}")
    E("  v_cvt_pk_bf16_f32 v16, v64, v65")
    E("  v_cvt_pk_bf16_f32 v17, v66, v67")
    E("  s_branch L_t_bst")
    E("L_t_down:")
    E("  v_lshlrev_b32 v12, 9, v10")
    E("  v_lshl_add_u32 v12, v11, 4, v12")
    E(f"  s_lshl_b32 s84, s{SRID}, 12")
    E(f"  s_add_u32 s84, s84, 0x{FP:x}")
    E(f"  s_add_u32 s85, s84, {14*4096}")
    for kc in range(8):
        E(f"  buffer_load_dwordx4 v[{32+4*kc}:{32+4*kc+3}], v12, s[{S_WS}:{S_WS+3}], s84 offen sc1")
        E(f"  buffer_load_dwordx4 v[{64+4*kc}:{64+4*kc+3}], v12, s[{S_WS}:{S_WS+3}], s85 offen sc1")
        if kc < 7:
            E(f"  s_add_u32 s84, s84, {28*4096}")
            E(f"  s_add_u32 s85, s85, {28*4096}")
    E("  s_waitcnt vmcnt(0)")
    for b0 in (32, 64):
        for r in range(4):
            E(f"  v_add_f32 v{b0+r}, v{b0+r}, v{b0+4+r}")
            E(f"  v_add_f32 v{b0+8+r}, v{b0+8+r}, v{b0+12+r}")
            E(f"  v_add_f32 v{b0+16+r}, v{b0+16+r}, v{b0+20+r}")
            E(f"  v_add_f32 v{b0+24+r}, v{b0+24+r}, v{b0+28+r}")
        for r in range(4):
            E(f"  v_add_f32 v{b0+r}, v{b0+r}, v{b0+8+r}")
            E(f"  v_add_f32 v{b0+16+r}, v{b0+16+r}, v{b0+24+r}")
        for r in range(4):
            E(f"  v_add_f32 v{b0+r}, v{b0+r}, v{b0+16+r}")
    for j in range(4):
        E(f"  v_cvt_pk_bf16_f32 v{40+j}, v{32+j}, v{64+j}")
    for j in range(4):
        E(f"  v_lshlrev_b32 v{32+j}, 16, v{40+j}")
        E(f"  v_and_b32 v{64+j}, 0xffff0000, v{40+j}")
    for j in range(4):
        E(f"  v_max_f32 v{32+j}, 0, v{32+j}")
    for j in range(4):
        E(f"  v_mul_f32 v{32+j}, v{32+j}, v{64+j}")
    E("  v_cvt_pk_bf16_f32 v16, v32, v33")
    E("  v_cvt_pk_bf16_f32 v17, v34, v35")
    E("L_t_bst:")
    E("  v_lshlrev_b32 v12, 3, v0")
    E(f"  ds_write_b64 v12, v[16:17] offset:{L_O}")
    E("  s_waitcnt lgkmcnt(0)")
    E("L_t_bdone:")
    E("  s_barrier")
    E("  v_and_b32 v10, 7, v3")
    E("  v_lshlrev_b32 v10, 8, v10")
    E("  v_lshl_add_u32 v10, v4, 4, v10")
    E(f"  s_and_b32 s84, s{SW}, 1")
    E("  s_lshl_b32 s84, s84, 7")
    E("  v_add_u32 v10, s84, v10")
    E(f"  ds_read_b128 v[16:19], v10 offset:{L_O}")
    E(f"  ds_read_b128 v[20:23], v10 offset:{L_O+64}")
    E("  s_waitcnt lgkmcnt(0)")
    for ks in range(2):
        for c in range(8):
            cc = "0" if ks == 0 else f"v[{ACC+4*c}:{ACC+4*c+3}]"
            E(f"  v_mfma_f32_16x16x32_bf16 v[{ACC+4*c}:{ACC+4*c+3}], v[{128+32*ks+4*c}:{128+32*ks+4*c+3}], v[{16+4*ks}:{19+4*ks}], {cc}")
    E("  v_lshlrev_b32 v9, 6, v3")
    E("  v_lshl_add_u32 v9, v4, 4, v9")
    E(f"  s_lshl_b32 s84, s{SW}, 12")
    E("  v_add_u32 v9, s84, v9")
    E("  v_cmp_gt_u32 vcc, 8, v3")
    E(f"  s_and_saveexec_b64 s[{EX}:{EX+1}], vcc")
    E("  s_nop 7")
    for c in range(8):
        E(f"  ds_write_b128 v9, v[{ACC+4*c}:{ACC+4*c+3}] offset:{L_RED+c*512}")
    E(f"  s_mov_b64 exec, s[{EX}:{EX+1}]")
    E("  s_waitcnt lgkmcnt(0)")
    E("  s_barrier")
    E("  v_and_b32 v9, 255, v0")
    E("  v_lshlrev_b32 v9, 4, v9")
    E("  v_lshrrev_b32 v13, 8, v0")
    E("  v_lshl_add_u32 v9, v13, 14, v9")
    for k in range(4):
        E(f"  ds_read_b128 v[{64+4*k}:{64+4*k+3}], v9 offset:{L_RED+k*4096}")
    E("  v_bfe_u32 v10, v0, 5, 3")
    E("  v_bfe_u32 v11, v0, 2, 3")
    E("  v_and_b32 v12, 3, v0")
    E("  v_lshlrev_b32 v11, 11, v11")
    E("  v_lshl_add_u32 v11, v10, 6, v11")
    E("  v_lshl_add_u32 v11, v12, 4, v11")
    E("  v_lshl_add_u32 v11, v13, 10, v11")
    E(f"  s_mov_b32 s84, s{SRID}")
    E(f"  s_cmp_eq_u32 s{SROLE}, 2")
    E("  s_cselect_b32 s85, 32, 0")
    E("  s_add_u32 s84, s84, s85")
    E("  s_lshl_b32 s84, s84, 14")
    E(f"  s_add_u32 s84, s84, 0x{P3:x}")
    E("  s_waitcnt lgkmcnt(0)")
    for r in range(4):
        E(f"  v_add_f32 v{64+r}, v{64+r}, v{68+r}")
        E(f"  v_add_f32 v{72+r}, v{72+r}, v{76+r}")
    E(f"  buffer_store_dwordx4 v[64:67], v11, s[{S_WS}:{S_WS+3}], s84 offen sc1")
    E(f"  buffer_store_dwordx4 v[72:75], v11, s[{S_WS}:{S_WS+3}], s84 offen offset:512 sc1")
    E("  s_waitcnt vmcnt(0)")
    E("  s_barrier")
    E(f"  s_cmp_lg_u32 s{SW}, 0")
    E("  s_cbranch_scc1 L_end")
    E(f"  s_mov_b32 s90, s{SRID}")
    E(f"  s_cmp_eq_u32 s{SROLE}, 2")
    E("  s_cselect_b32 s85, 32, 0")
    E("  s_add_u32 s90, s90, s85")
    set_flag(FLS, 90)
    stamp(10)
    E("  s_branch L_end")
    E("L_final:")
    E(f"  s_cmp_lg_u32 s{SW}, 0")
    E("  s_cbranch_scc1 L_f_wait")
    E("  v_lshlrev_b32 v11, 7, v1")
    E(f"  v_add_u32 v11, 0x{FLS:x}, v11")
    E("  s_mov_b32 s92, 0xffffffff")
    E("  s_mov_b32 s93, 0x00003fff")
    poll_flags(11, 92)
    E("L_f_wait:")
    E("  s_barrier")
    stamp(10)
    E("  v_lshrrev_b32 v10, 5, v0")
    E("  v_and_b32 v11, 31, v0")
    E("  v_lshlrev_b32 v12, 14, v10")
    E("  v_lshl_add_u32 v12, v11, 4, v12")
    E(f"  s_lshl_b32 s84, s{SRID}, 9")
    E(f"  s_add_u32 s84, s84, 0x{P3:x}")
    E(f"  buffer_load_dwordx4 v[64:67], v12, s[{S_WS}:{S_WS+3}], s84 offen sc1")
    E(f"  s_add_u32 s85, s84, {16*16384}")
    E(f"  buffer_load_dwordx4 v[68:71], v12, s[{S_WS}:{S_WS+3}], s85 offen sc1")
    E(f"  s_add_u32 s85, s84, {32*16384}")
    for r in range(4):
        E(f"  v_mov_b32 v{72+r}, 0")
    E("  v_cmp_gt_u32 vcc, 14, v10")
    E(f"  s_and_saveexec_b64 s[{EX}:{EX+1}], vcc")
    E(f"  buffer_load_dwordx4 v[72:75], v12, s[{S_WS}:{S_WS+3}], s85 offen sc1")
    E(f"  s_mov_b64 exec, s[{EX}:{EX+1}]")
    E("  v_lshrrev_b32 v13, 2, v11")
    E("  v_and_b32 v14, 3, v11")
    E("  v_lshl_add_u32 v13, v14, 5, v13")
    E("  v_lshlrev_b32 v13, 1, v13")
    E(f"  s_lshl_b32 s86, s{SRID}, 8")
    for r in range(4):
        E(f"  buffer_load_ushort v{16+r}, v13, s[{S_X}:{S_X+3}], s86 offen offset:{r*16}")
    E("  s_waitcnt vmcnt(0)")
    for r in range(4):
        E(f"  v_add_f32 v{64+r}, v{64+r}, v{68+r}")
    E("  v_lshlrev_b32 v9, 4, v0")
    E(f"  ds_write_b128 v9, v[64:67] offset:{L_RED}")
    E(f"  ds_write_b128 v9, v[72:75] offset:{L_RED+8192}")
    E("  s_waitcnt lgkmcnt(0)")
    E("  s_barrier")
    E(f"  s_cmp_lg_u32 s{SW}, 0")
    E("  s_cbranch_scc1 L_end")
    E("  v_lshrrev_b32 v9, 5, v1")
    E("  v_lshlrev_b32 v9, 13, v9")
    E("  v_lshl_add_u32 v9, v11, 4, v9")
    for k in range(16):
        E(f"  ds_read_b128 v[{64+4*k}:{64+4*k+3}], v9 offset:{L_RED+k*512}")
    E("  s_waitcnt lgkmcnt(0)")
    for st in (1, 2, 4, 8):
        for k in range(0, 16, 2*st):
            for r in range(4):
                E(f"  v_add_f32 v{64+4*k+r}, v{64+4*k+r}, v{64+4*(k+st)+r}")
    E("  v_lshlrev_b32 v8, 2, v1")
    E("  v_xor_b32 v8, 128, v8")
    for r in range(4):
        E(f"  ds_bpermute_b32 v{96+r}, v8, v{64+r}")
    E("  s_waitcnt lgkmcnt(0)")
    for r in range(4):
        E(f"  v_cvt_pk_bf16_f32 v{20+r}, v{64+r}, v{96+r}")
    for r in range(4):
        E(f"  v_lshlrev_b32 v{64+r}, 16, v{20+r}")
        E(f"  v_and_b32 v{96+r}, 0xffff0000, v{20+r}")
    for r in range(4):
        E(f"  v_mul_f32 v{24+r}, 0x{LOG2E ^ 0x80000000:x}, v{96+r}")
    for r in range(4):
        E(f"  v_exp_f32 v{24+r}, v{24+r}")
    E("  s_nop 0")
    for r in range(4):
        E(f"  v_add_f32 v{24+r}, 1.0, v{24+r}")
    for r in range(4):
        E(f"  v_rcp_f32 v{24+r}, v{24+r}")
    E("  s_nop 0")
    for r in range(4):
        E(f"  v_mul_f32 v{24+r}, v{96+r}, v{24+r}")
    for r in range(4):
        E(f"  v_cvt_pk_bf16_f32 v{24+r}, v{24+r}, v{24+r}")
    for r in range(4):
        E(f"  v_lshlrev_b32 v{24+r}, 16, v{24+r}")
    for r in range(4):
        E(f"  v_mul_f32 v{24+r}, v{64+r}, v{24+r}")
    for r in range(4):
        E(f"  v_cvt_pk_bf16_f32 v{24+r}, v{24+r}, v{24+r}")
    for r in range(4):
        E(f"  v_lshlrev_b32 v{24+r}, 16, v{24+r}")
        E(f"  v_lshlrev_b32 v{16+r}, 16, v{16+r}")
    for r in range(4):
        E(f"  v_add_f32 v{24+r}, v{16+r}, v{24+r}")
    for r in range(4):
        E(f"  v_cvt_pk_bf16_f32 v{24+r}, v{24+r}, v{24+r}")
    E("  s_mov_b32 s92, 0xffffffff")
    E("  s_mov_b32 s93, 0")
    E("  s_mov_b64 exec, s[92:93]")
    for r in range(4):
        E(f"  buffer_store_short v{24+r}, v13, s[{S_OUT}:{S_OUT+3}], s86 offen offset:{r*16}")
    E("  s_mov_b64 exec, -1")
    stamp(11)
    E("L_end:")
    stamp(12)
    stamp_dump()
    E("L_end2:")
    E("  s_endpgm")

E(f"; @launch grid=(256,1,1) block=(512,1,1) lds={L_SIZE}")
E('.amdgcn_target "amdgcn-amd-amdhsa--gfx950"')
E(".text")
gen()
E('.section .rodata,"a"')
E(".p2align 6")
E(f".amdhsa_kernel {NAME}_kernel")
E("  .amdhsa_next_free_vgpr 256")
E("  .amdhsa_next_free_sgpr 102")
E("  .amdhsa_accum_offset 256")
E("  .amdhsa_group_segment_fixed_size 0")
E("  .amdhsa_kernarg_size 96")
E("  .amdhsa_user_sgpr_count 2")
E("  .amdhsa_user_sgpr_kernarg_segment_ptr 1")
E("  .amdhsa_system_sgpr_workgroup_id_x 1")
E("  .amdhsa_float_denorm_mode_32 3")
E(".end_amdhsa_kernel")
out = [o for o in out if o is not None]
open(sys.argv[1] if len(sys.argv) > 1 else f"cdna_kernels/{NAME}.s", "w").write("\n".join(out) + "\n")
```

```python
import sys

NAME = "recurrent_scan__gqa_block_cached__glu_gated_reglu__decode"
out = []
def E(s=""):
    out.append(s)

DIAG = len(sys.argv) > 2 and "diag" in sys.argv[2:]

QP = 0x0
FP = 0x100000
OP = 0x200000
ML = 0x280000
P3 = 0x290000
STAMP_BASE = 0x600000
FLQ = 0x380000
FLA = 0x390000
FLS = 0x3a0000
FLG = 0x3b0000
SNON = 91
WS_SIZE = 0x20000000
L_RED = 0
L_ML = 32768
L_Q = 33024
L_O = 34048
L_SIZE = 36096
LOG2E = 0x3FB8AA3B
SCALE = 0x3DB504F3

S_K, S_V, S_WS, S_DBG, S_X, S_W, S_W2, S_OUT = 28, 32, 36, 40, 44, 48, 52, 56
SW, SPAIR, SSPLIT, SB, SKVH = 60, 61, 62, 63, 64
SROLE = 65
ST0, ST1 = 66, 67
SRID = 68
SLO, SHI, SSC, SL2E = 70, 71, 72, 73
SK0, SK1, SV0, SV1 = 74, 75, 76, 77
EX = 80

RING = [64, 96, 128, 160]
TT = 192
ACC = 224
SC = 32
QR = 192
DD = 16
def opt(name, default):
    for a in sys.argv[2:]:
        if a.startswith(name + "="):
            return int(a.split("=")[1])
    return default
NT = {0: "", 1: " nt", 2: " sc1 nt", 3: " sc0 sc1 nt", 4: " sc0 nt", 5: " sc1", 6: " sc0 sc1"}[opt("nt", 1)]
ROT = opt("rot", 1)
SPIN = 100000
NB1 = opt("nb1", 4)

STREGS = [3, 14, 15, 69, 78, 79, 83, 94, 95, 96, 97, 100, 101]
def stamp(i):
    if not DIAG:
        return
    E("  s_memrealtime s[98:99]")
    E("  s_waitcnt lgkmcnt(0)")
    E(f"  s_mov_b32 s{STREGS[i]}, s98")
def stamp_init():
    if not DIAG:
        return
    for r in STREGS:
        E(f"  s_mov_b32 s{r}, 0")
def stamp_dump():
    if not DIAG:
        return
    E("  s_waitcnt vmcnt(0) lgkmcnt(0)")
    E(f"  s_lshl_b32 s98, s2, 3")
    E(f"  s_add_u32 s98, s98, s{SW}")
    E(f"  s_lshl_b32 s98, s98, 7")
    E(f"  s_add_u32 s98, s98, 0x{STAMP_BASE:x}")
    E("  s_mov_b64 exec, 1")
    E("  v_mov_b32 v1, 0")
    for i, r in enumerate(STREGS):
        E(f"  v_mov_b32 v2, s{r}")
        E(f"  buffer_store_dword v2, v1, s[{S_WS}:{S_WS+3}], s98 offen offset:{i*4}")
        E("  s_waitcnt vmcnt(0)")

def srd(d, ptr, size):
    E(f"  s_mov_b32 s{d}, s{ptr}")
    E(f"  s_mov_b32 s{d+1}, s{ptr+1}")
    E(f"  s_mov_b32 s{d+2}, 0x{size:x}")
    E(f"  s_mov_b32 s{d+3}, 0x00020000")

def transpose(S, T):
    for q in range(4):
        for e in range(2):
            c = 2*q+e
            for p in range(4):
                sel = SLO if e == 0 else SHI
                E(f"  v_perm_b32 v{T+4*c+p}, v{S+4*(2*p+1)+q}, v{S+4*(2*p)+q}, s{sel}")

def bperm_xor(dst, src, addr_tmp, lane4, x):
    E(f"  v_xor_b32 v{addr_tmp}, {x*4}, v{lane4}")
    E(f"  ds_bpermute_b32 v{dst}, v{addr_tmp}, v{src}")
    E("  s_waitcnt lgkmcnt(0)")

def adv(s0):
    if ROT:
        E(f"  s_add_u32 s99, s{s0}, 8192")
        E(f"  s_and_b32 s99, s99, 0xffff")
        E(f"  s_and_b32 s{s0}, s{s0}, 0xffff0000")
        E(f"  s_or_b32 s{s0}, s{s0}, s99")
        E(f"  s_add_u32 s{s0+1}, s{s0}, 4096")
    else:
        E(f"  s_add_u32 s{s0}, s{s0}, 8192")
        E(f"  s_add_u32 s{s0+1}, s{s0+1}, 8192")

def issue_tile(idx):
    b = RING[idx % 4]
    if idx < 8:
        for i in range(8):
            E(f"  buffer_load_dwordx4 v[{b+4*i}:{b+4*i+3}], v5, s[{S_K}:{S_K+3}], s{SK0+(i>>2)} offen offset:{(i&3)*1024}{NT}")
        adv(SK0)
    else:
        for i in range(8):
            E(f"  buffer_load_dwordx4 v[{b+4*i}:{b+4*i+3}], v6, s[{S_V}:{S_V+3}], s{SV0+(i>>2)} offen offset:{(i&3)*1024}{NT}")
        adv(SV0)

def issue_tailw(j):
    b = RING[j]
    s = ST0 + j
    for i in range(8):
        E(f"  buffer_load_dwordx4 v[{b+4*i}:{b+4*i+3}], v7, s[{S_W}:{S_W+3}], s{s} offen")
        if i < 7:
            E(f"  s_add_u32 s{s}, s{s}, 8192")

lbl = [0]
def poll_flags(vaddr, active_sgpr_pair):
    lbl[0] += 1
    L = f"L_poll{lbl[0]}"
    E(f"  s_mov_b32 s82, {SPIN}")
    E(f"  buffer_load_dword v8, v{vaddr}, s[{S_WS}:{S_WS+3}], 0 offen sc1")
    E(f"{L}:")
    E("  s_sleep 1")
    E(f"  buffer_load_dword v9, v{vaddr}, s[{S_WS}:{S_WS+3}], 0 offen sc1")
    E("  s_waitcnt vmcnt(1)")
    E(f"  v_cmp_ne_u32 vcc, s{SNON}, v8")
    E(f"  s_and_b64 vcc, vcc, s[{active_sgpr_pair}:{active_sgpr_pair+1}]")
    E(f"  s_cbranch_scc0 {L}_done")
    E("  s_sleep 1")
    E(f"  buffer_load_dword v8, v{vaddr}, s[{S_WS}:{S_WS+3}], 0 offen sc1")
    E("  s_waitcnt vmcnt(1)")
    E(f"  v_cmp_ne_u32 vcc, s{SNON}, v9")
    E(f"  s_and_b64 vcc, vcc, s[{active_sgpr_pair}:{active_sgpr_pair+1}]")
    E(f"  s_cbranch_scc0 {L}_done")
    E("  s_sub_u32 s82, s82, 1")
    E("  s_cmp_eq_u32 s82, 0")
    E(f"  s_cbranch_scc0 {L}")
    E(f"{L}_done:")
    E("  s_waitcnt vmcnt(0)")

def set_flag(base, idx_sgpr):
    E(f"  s_lshl_b32 s89, s{idx_sgpr}, 7")
    E(f"  s_add_u32 s89, s89, 0x{base:x}")
    E("  v_mov_b32 v8, s89")
    E(f"  v_mov_b32 v9, s{SNON}")
    E(f"  s_mov_b64 s[{EX}:{EX+1}], exec")
    E("  s_mov_b64 exec, 1")
    E(f"  buffer_store_dword v9, v8, s[{S_WS}:{S_WS+3}], 0 offen sc1")
    E(f"  s_mov_b64 exec, s[{EX}:{EX+1}]")

def gen():
    K = NAME + "_kernel"
    E(f".globl {K}")
    E(".p2align 8")
    E(f".type {K},@function")
    E(f"{K}:")
    E("  s_cmp_ge_u32 s2, 256")
    E("  s_cbranch_scc1 L_end2")
    E("  s_load_dwordx16 s[4:19], s[0:1], 0")
    E("  s_load_dwordx8 s[20:27], s[0:1], 64")
    E("  v_and_b32 v1, 63, v0")
    E("  v_lshrrev_b32 v2, 6, v0")
    E("  v_and_b32 v3, 15, v1")
    E("  v_lshrrev_b32 v4, 4, v1")
    E(f"  v_readfirstlane_b32 s{SW}, v2")
    E(f"  s_lshr_b32 s{SPAIR}, s2, 2")
    E(f"  s_and_b32 s{SSPLIT}, s2, 3")
    E(f"  s_lshr_b32 s{SB}, s{SPAIR}, 3")
    E(f"  s_and_b32 s{SKVH}, s{SPAIR}, 7")
    E(f"  s_mov_b32 s{SLO}, 0x05040100")
    E(f"  s_mov_b32 s{SHI}, 0x07060302")
    E(f"  s_mov_b32 s{SSC}, 0x{SCALE:x}")
    E(f"  s_mov_b32 s{SL2E}, 0x{LOG2E:x}")
    E("  v_lshlrev_b32 v5, 6, v3")
    E("  v_lshl_add_u32 v5, v4, 4, v5")
    E("  v_lshlrev_b32 v6, 8, v4")
    E("  v_lshl_add_u32 v6, v3, 4, v6")
    E(f"  s_lshl_b32 s{SK0}, s{SPAIR}, 21")
    E(f"  s_lshl_b32 s84, s{SSPLIT}, 19")
    E(f"  s_add_u32 s{SK0}, s{SK0}, s84")
    E(f"  s_lshl_b32 s84, s{SW}, 16")
    E(f"  s_add_u32 s{SK0}, s{SK0}, s84")
    if ROT:
        E(f"  s_lshr_b32 s84, s2, 2")
        E(f"  s_add_u32 s84, s84, s2")
        E(f"  s_add_u32 s84, s84, s{SW}")
        E(f"  s_and_b32 s84, s84, 7")
        E(f"  s_lshl_b32 s84, s84, 13")
        E(f"  s_add_u32 s{SK0}, s{SK0}, s84")
    E(f"  s_add_u32 s{SK1}, s{SK0}, 4096")
    E(f"  s_mov_b32 s{SV0}, s{SK0}")
    E(f"  s_mov_b32 s{SV1}, s{SK1}")
    E("  s_waitcnt lgkmcnt(0)")
    srd(S_K, 6, 0x8000000)
    srd(S_V, 8, 0x8000000)
    srd(S_WS, 26, WS_SIZE)
    srd(S_DBG, 24, 256)
    srd(S_X, 4, 8192)
    srd(S_OUT, 22, 8192)
    stamp_init()
    stamp(0)
    E(f"  s_cmp_eq_u32 s{SW}, 0")
    E("  s_cbranch_scc1 L_helper")
    E("  s_barrier")
    for idx in range(NB1):
        issue_tile(idx)
    E("  s_branch L_join")
    E("L_helper:")
    E("  v_mov_b32 v8, 0")
    E("  s_cmp_lg_u32 s2, 0")
    E("  s_cbranch_scc1 L_h_nonon")
    E("  s_memrealtime s[98:99]")
    E("  s_waitcnt lgkmcnt(0)")
    E("  s_or_b32 s98, s98, 1")
    E("  v_mov_b32 v2, s98")
    E(f"  s_mov_b64 s[{EX}:{EX+1}], exec")
    E("  s_mov_b64 exec, 1")
    E(f"  buffer_store_dword v2, v8, s[{S_DBG}:{S_DBG+3}], 0 offen sc1")
    E(f"  s_mov_b64 exec, s[{EX}:{EX+1}]")
    E("  s_branch L_h_non2")
    E("L_h_nonon:")
    E("  v_mov_b32 v2, 0")
    E("L_h_non2:")
    E("  s_and_b32 s84, s2, 7")
    E("  s_lshr_b32 s85, s2, 3")
    srd(S_W, 10, 512*8192)
    E("  s_cmp_lt_u32 s85, 14")
    E("  s_cselect_b32 s86, s16, s18")
    E("  s_cselect_b32 s87, s17, s19")
    E("  s_cselect_b32 s88, 0, 14")
    E("  s_sub_u32 s88, s85, s88")
    E(f"  s_mov_b32 s{S_W2}, s86")
    E(f"  s_mov_b32 s{S_W2+1}, s87")
    E(f"  s_mov_b32 s{S_W2+2}, 0x{512*3584:x}")
    E(f"  s_mov_b32 s{S_W2+3}, 0x00020000")
    E("  s_cmp_lt_u32 s2, 224")
    E("  s_cbranch_scc1 L_h_guok")
    E(f"  s_mov_b32 s{S_W2+2}, 0")
    E("L_h_guok:")
    E("  v_and_b32 v8, 7, v1")
    E("  v_lshrrev_b32 v9, 3, v1")
    E("  v_lshlrev_b32 v8, 10, v8")
    E("  v_lshl_add_u32 v8, v9, 7, v8")
    for i in range(8):
        E(f"  buffer_load_dwordx4 v[{96+4*i}:{96+4*i+3}], v8, s[{S_X}:{S_X+3}], 0 offen offset:{16*i}")
    E("  v_and_b32 v9, 7, v3")
    E("  v_lshlrev_b32 v9, 10, v9")
    E("  v_lshl_add_u32 v9, v4, 4, v9")
    E("  s_lshl_b32 s89, s84, 7")
    E(f"  buffer_load_dwordx4 v[24:27], v9, s[{S_X}:{S_X+3}], s89 offen")
    E(f"  buffer_load_dwordx4 v[28:31], v9, s[{S_X}:{S_X+3}], s89 offen offset:64")
    E("  v_lshlrev_b32 v10, 16, v4")
    E("  v_lshl_add_u32 v10, v3, 4, v10")
    E("  s_lshl_b32 s89, s84, 19")
    E("  s_lshl_b32 s90, s85, 8")
    E("  s_add_u32 s89, s89, s90")
    for ks in range(2):
        for i in range(8):
            r = 192 + 32*ks + 4*i
            E(f"  buffer_load_dwordx4 v[{r}:{r+3}], v10, s[{S_W}:{S_W+3}], s89 offen")
            E(f"  s_add_u32 s89, s89, {8192 if i < 7 else 8192*25}")
    E("  s_movk_i32 s90, 3584*8")
    E("  v_mul_lo_u32 v11, v4, s90")
    E("  v_lshl_add_u32 v11, v3, 4, v11")
    E("  s_mul_i32 s89, s84, 64*3584")
    E("  s_lshl_b32 s90, s88, 8")
    E("  s_add_u32 s89, s89, s90")
    for ks in range(2):
        for i in range(8):
            r = 32 + 32*ks + 4*i
            E(f"  buffer_load_dwordx4 v[{r}:{r+3}], v11, s[{S_W2}:{S_W2+3}], s89 offen")
            E(f"  s_add_u32 s89, s89, {3584 if i < 7 else 3584*25}")
    E("  s_barrier")
    E("  v_lshlrev_b32 v8, 2, v1")
    E("  s_waitcnt vmcnt(34)")
    for i in range(32):
        E(f"  v_lshlrev_b32 v{128+2*i}, 16, v{96+i}")
        E(f"  v_and_b32 v{129+2*i}, 0xffff0000, v{96+i}")
    for k in range(4):
        E(f"  v_add_f32 v{12+k}, v{128+k}, v{132+k}")
    for i in range(8, 64, 4):
        for k in range(4):
            E(f"  v_add_f32 v{12+k}, v{12+k}, v{128+i+k}")
    E("  v_add_f32 v12, v12, v13")
    E("  v_add_f32 v14, v14, v15")
    E("  v_add_f32 v12, v12, v14")
    for x in (8, 16, 32):
        bperm_xor(13, 12, 9, 8, x)
        E("  v_add_f32 v12, v12, v13")
    E("  v_mul_f32 v12, 0x3b000000, v12")
    for k in range(4):
        E(f"  v_mov_b32 v{96+k}, 0")
    for i in range(0, 64, 4):
        for k in range(4):
            E(f"  v_sub_f32 v{100+k}, v{128+i+k}, v12")
        for k in range(4):
            E(f"  v_fmac_f32 v{96+k}, v{100+k}, v{100+k}")
    E("  v_add_f32 v96, v96, v97")
    E("  v_add_f32 v98, v98, v99")
    E("  v_add_f32 v14, v96, v98")
    for x in (8, 16, 32):
        bperm_xor(13, 14, 9, 8, x)
        E("  v_add_f32 v14, v14, v13")
    E("  v_mul_f32 v14, 0x3b000000, v14")
    E("  v_cvt_pk_bf16_f32 v13, v12, v14")
    E("  v_lshlrev_b32 v12, 16, v13")
    E("  v_and_b32 v14, 0xffff0000, v13")
    E("  v_add_f32 v14, 0x3727c5ac, v14")
    E("  v_cvt_pk_bf16_f32 v13, v14, v14")
    E("  v_lshlrev_b32 v14, 16, v13")
    E("  v_sqrt_f32 v14, v14")
    E("  s_nop 0")
    E("  v_cvt_pk_bf16_f32 v13, v14, v14")
    E("  v_lshlrev_b32 v14, 16, v13")
    E("  v_rcp_f32 v15, v14")
    E("  s_waitcnt vmcnt(32)")
    for i in range(8):
        E(f"  v_lshlrev_b32 v{96+2*i}, 16, v{24+i}")
        E(f"  v_and_b32 v{97+2*i}, 0xffff0000, v{24+i}")
    for i in range(16):
        E(f"  v_sub_f32 v{96+i}, v{96+i}, v12")
    for i in range(8):
        E(f"  v_cvt_pk_bf16_f32 v{24+i}, v{96+2*i}, v{97+2*i}")
    for i in range(8):
        E(f"  v_lshlrev_b32 v{96+2*i}, 16, v{24+i}")
        E(f"  v_and_b32 v{97+2*i}, 0xffff0000, v{24+i}")
    for i in range(16):
        E(f"  v_mul_f32 v{112+i}, v{96+i}, v15")
    for i in range(16):
        E(f"  v_fma_f32 v{128+i}, -v{112+i}, v14, v{96+i}")
    for i in range(16):
        E(f"  v_fma_f32 v{112+i}, v{128+i}, v15, v{112+i}")
    for i in range(8):
        E(f"  v_cvt_pk_bf16_f32 v{16+i}, v{112+2*i}, v{113+2*i}")
    E("  v_lshlrev_b32 v12, 9, v3")
    E("  v_lshl_add_u32 v12, v4, 4, v12")
    E("  v_cmp_gt_u32 vcc, 8, v3")
    E("  s_mov_b64 s[92:93], vcc")
    stamp(1)
    E("  s_waitcnt vmcnt(16)")
    for ks in range(2):
        transpose(192 + 32*ks, 128)
        E("  s_nop 1")
        for c in range(8):
            cc = "0" if ks == 0 else f"v[{160+4*c}:{160+4*c+3}]"
            E(f"  v_mfma_f32_16x16x32_bf16 v[{160+4*c}:{160+4*c+3}], v[{128+4*c}:{128+4*c+3}], v[{16+4*ks}:{19+4*ks}], {cc}")
    E("  s_lshl_b32 s89, s84, 5")
    E("  s_add_u32 s89, s89, s85")
    E("  s_lshl_b32 s89, s89, 12")
    E(f"  s_mov_b64 s[{EX}:{EX+1}], exec")
    E("  s_mov_b64 exec, s[92:93]")
    E("  s_nop 4")
    for c in range(8):
        E(f"  buffer_store_dwordx4 v[{160+4*c}:{160+4*c+3}], v12, s[{S_WS}:{S_WS+3}], s89 offen offset:{c*64} sc1")
    E(f"  s_mov_b64 exec, s[{EX}:{EX+1}]")
    E("  s_waitcnt vmcnt(8)")
    for ks in range(2):
        transpose(32 + 32*ks, 128)
        E("  s_nop 1")
        for c in range(8):
            cc = "0" if ks == 0 else f"v[{192+4*c}:{192+4*c+3}]"
            E(f"  v_mfma_f32_16x16x32_bf16 v[{192+4*c}:{192+4*c+3}], v[{128+4*c}:{128+4*c+3}], v[{16+4*ks}:{19+4*ks}], {cc}")
    stamp(2)
    E(f"  v_readfirstlane_b32 s{SNON}, v2")
    E("  s_nop 3")
    E(f"  s_cmp_lg_u32 s{SNON}, 0")
    E("  s_cbranch_scc1 L_h_non_done")
    E("  v_mov_b32 v8, 0")
    E(f"  s_mov_b32 s82, {SPIN}")
    E("L_h_non:")
    E(f"  buffer_load_dword v9, v8, s[{S_DBG}:{S_DBG+3}], 0 offen sc1")
    E("  s_waitcnt vmcnt(0)")
    E(f"  v_readfirstlane_b32 s{SNON}, v9")
    E("  s_nop 3")
    E(f"  s_cmp_lg_u32 s{SNON}, 0")
    E("  s_cbranch_scc1 L_h_non_done")
    E("  s_sleep 1")
    E("  s_sub_u32 s82, s82, 1")
    E("  s_cmp_eq_u32 s82, 0")
    E("  s_cbranch_scc0 L_h_non")
    E("L_h_non_done:")
    E("  s_waitcnt vmcnt(0)")
    set_flag(FLQ, 2)
    E("  s_cmp_ge_u32 s2, 224")
    E("  s_cbranch_scc1 L_h_nogu")
    E("  s_mul_i32 s89, s84, 28")
    E("  s_add_u32 s89, s89, s85")
    E("  s_lshl_b32 s89, s89, 12")
    E(f"  s_add_u32 s89, s89, 0x{FP:x}")
    E(f"  s_mov_b64 s[{EX}:{EX+1}], exec")
    E("  s_mov_b64 exec, s[92:93]")
    for c in range(8):
        E(f"  buffer_store_dwordx4 v[{192+4*c}:{192+4*c+3}], v12, s[{S_WS}:{S_WS+3}], s89 offen offset:{c*64} sc1")
    E(f"  s_mov_b64 exec, s[{EX}:{EX+1}]")
    E("L_h_nogu:")
    stamp(3)
    E("  v_and_b32 v11, 31, v1")
    E(f"  s_lshl_b32 s89, s{SKVH}, 5")
    E("  v_add_u32 v11, s89, v11")
    E("  v_lshlrev_b32 v11, 7, v11")
    E(f"  v_add_u32 v11, 0x{FLQ:x}, v11")
    E("  s_mov_b64 s[92:93], exec")
    poll_flags(11, 92)
    stamp(4)
    E("  v_lshrrev_b32 v10, 5, v1")
    E("  v_and_b32 v11, 31, v1")
    E("  v_lshlrev_b32 v12, 12, v10")
    E("  v_lshl_add_u32 v12, v11, 4, v12")
    E(f"  s_lshl_b32 s89, s{SKVH}, 14")
    E(f"  s_lshl_b32 s90, s{SB}, 9")
    E("  s_add_u32 s89, s89, s90")
    E("  s_add_u32 s90, s89, 8192")
    for kc in range(8):
        E(f"  buffer_load_dwordx4 v[{64+4*kc}:{64+4*kc+3}], v12, s[{S_WS}:{S_WS+3}], s89 offen sc1")
        E(f"  buffer_load_dwordx4 v[{96+4*kc}:{96+4*kc+3}], v12, s[{S_WS}:{S_WS+3}], s90 offen sc1")
        if kc < 7:
            E("  s_add_u32 s89, s89, 131072")
            E("  s_add_u32 s90, s90, 131072")
    E("  v_and_b32 v13, 3, v11")
    E("  v_lshrrev_b32 v14, 2, v11")
    E("  v_lshlrev_b32 v13, 5, v13")
    E("  v_add_u32 v13, v13, v14")
    E("  v_lshl_add_u32 v13, v10, 7, v13")
    E("  v_lshlrev_b32 v13, 1, v13")
    E("  s_waitcnt vmcnt(0)")
    set_flag(FLG, 2)
    for half in range(2):
        b0 = 64 + 32*half
        for r in range(4):
            E(f"  v_add_f32 v{b0+r}, v{b0+r}, v{b0+4+r}")
            E(f"  v_add_f32 v{b0+8+r}, v{b0+8+r}, v{b0+12+r}")
            E(f"  v_add_f32 v{b0+16+r}, v{b0+16+r}, v{b0+20+r}")
            E(f"  v_add_f32 v{b0+24+r}, v{b0+24+r}, v{b0+28+r}")
        for r in range(4):
            E(f"  v_add_f32 v{b0+r}, v{b0+r}, v{b0+8+r}")
            E(f"  v_add_f32 v{b0+16+r}, v{b0+16+r}, v{b0+24+r}")
        for r in range(4):
            E(f"  v_add_f32 v{b0+r}, v{b0+r}, v{b0+16+r}")
        E(f"  v_cvt_pk_bf16_f32 v{b0+4}, v{b0}, v{b0+1}")
        E(f"  v_cvt_pk_bf16_f32 v{b0+5}, v{b0+2}, v{b0+3}")
        E(f"  ds_write_b16 v13, v{b0+4} offset:{L_Q+half*512}")
        E(f"  ds_write_b16_d16_hi v13, v{b0+4} offset:{L_Q+half*512+16}")
        E(f"  ds_write_b16 v13, v{b0+5} offset:{L_Q+half*512+32}")
        E(f"  ds_write_b16_d16_hi v13, v{b0+5} offset:{L_Q+half*512+48}")
    E("  s_waitcnt lgkmcnt(0)")
    for idx in range(NB1):
        issue_tile(idx)
    E("L_join:")
    E(f"  s_mov_b32 s{SROLE}, 0")
    E(f"  s_mov_b32 s{ST0}, 0")
    E(f"  s_mov_b32 s{ST1}, 0")
    E(f"  s_lshr_b32 s{SRID}, s2, 3")
    E("  s_and_b32 s84, s2, 7")
    E(f"  s_sub_u32 s85, s84, s{SRID}")
    E("  s_and_b32 s85, s85, 7")
    srd(S_W, 12, 4096*1024)
    E("  s_cmp_eq_u32 s85, 0")
    E("  s_cbranch_scc1 L_role_wo")
    E("  s_cmp_eq_u32 s85, 5")
    E("  s_cbranch_scc1 L_role_fin")
    E("  s_cmp_lg_u32 s85, 3")
    E("  s_cbranch_scc1 L_norole")
    E(f"  s_cmp_ge_u32 s{SRID}, 14")
    E("  s_cbranch_scc1 L_norole")
    srd(S_W, 20, 1792*1024)
    E(f"  s_mov_b32 s{SROLE}, 2")
    E("  s_branch L_role_w")
    E("L_role_wo:")
    E(f"  s_mov_b32 s{SROLE}, 1")
    E("L_role_w:")
    E(f"  s_lshl_b32 s84, s{SRID}, 7")
    E(f"  s_and_b32 s85, s{SW}, 1")
    E("  s_lshl_b32 s85, s85, 2")
    E("  s_add_u32 s84, s84, s85")
    E("  s_lshl_b32 s84, s84, 10")
    E(f"  s_lshr_b32 s85, s{SW}, 1")
    E("  s_lshl_b32 s85, s85, 8")
    E(f"  s_add_u32 s{ST0}, s84, s85")
    E(f"  s_add_u32 s{ST1}, s{ST0}, 2048")
    E("  s_branch L_roledone")
    E("L_role_fin:")
    E(f"  s_mov_b32 s{SROLE}, 3")
    E("L_norole:")
    E(f"  s_mov_b32 s{S_W+2}, 0")
    E("L_roledone:")
    E("  v_and_b32 v7, 1, v4")
    E("  v_lshlrev_b32 v7, 6, v7")
    E("  v_lshrrev_b32 v8, 1, v4")
    E("  v_add_u32 v7, v7, v8")
    E("  v_lshlrev_b32 v7, 10, v7")
    E("  v_lshl_add_u32 v7, v3, 4, v7")
    E("  s_barrier")
    stamp(5)
    for idx in range(NB1, 4):
        issue_tile(idx)
    E("  v_and_b32 v9, 3, v3")
    E("  v_lshlrev_b32 v9, 8, v9")
    E("  v_lshrrev_b32 v10, 2, v3")
    E("  v_lshl_add_u32 v9, v10, 6, v9")
    E("  v_lshl_add_u32 v9, v4, 4, v9")
    E(f"  ds_read_b128 v[{QR}:{QR+3}], v9 offset:{L_Q}")
    E("  v_mov_b32 v12, 0xff800000")
    E("  s_waitcnt lgkmcnt(0)")
    DR = [16, 20, 24, 28, 196, 200, 204, 208]
    SS = 212
    for idx in range(8):
        b = RING[idx % 4]
        E("  s_waitcnt vmcnt(24)")
        for i in range(8):
            E(f"  v_mfma_f32_16x16x32_bf16 v[{DR[i]}:{DR[i]+3}], v[{b+4*i}:{b+4*i+3}], v[{QR}:{QR+3}], 0")
        issue_tile(idx+4)
        for i in range(8):
            E(f"  v_add_f32_dpp v{SS+i}, v{DR[i]+1}, v{DR[i]} row_shl:4 row_mask:0xf bank_mask:0xf bound_ctrl:0")
        for i in range(8):
            E(f"  v_add_f32_dpp v{SS+i}, v{DR[i]+2}, v{SS+i} row_shl:8 row_mask:0xf bank_mask:0xf bound_ctrl:0")
        for i in range(8):
            E(f"  v_add_f32_dpp v{SS+i}, v{DR[i]+3}, v{SS+i} row_shl:12 row_mask:0xf bank_mask:0xf bound_ctrl:0")
        for p in range(4):
            E(f"  v_cvt_pk_bf16_f32 v{16+p}, v{SS+2*p}, v{SS+2*p+1}")
        for p in range(4):
            E(f"  v_lshlrev_b32 v{SS+2*p}, 16, v{16+p}")
            E(f"  v_and_b32 v{SS+2*p+1}, 0xffff0000, v{16+p}")
        for k in range(8):
            E(f"  v_mul_f32 v{SS+k}, s{SSC}, v{SS+k}")
        for p in range(4):
            E(f"  v_cvt_pk_bf16_f32 v{SC+4*idx+p}, v{SS+2*p}, v{SS+2*p+1}")
        for p in range(4):
            E(f"  v_max3_f32 v12, v{SS+2*p}, v{SS+2*p+1}, v12")
    E("  v_lshlrev_b32 v8, 2, v1")
    for x in (16, 32):
        bperm_xor(13, 12, 9, 8, x)
        E("  v_max_f32 v12, v12, v13")
    E("  v_cvt_pk_bf16_f32 v13, v12, v12")
    E("  v_lshlrev_b32 v12, 16, v13")
    E(f"  v_mul_f32 v13, s{SL2E}, v12")
    E("  v_mov_b32 v14, 0")
    E("  v_mov_b32 v15, 0")
    stamp(6)
    for idx in range(8, 16):
        j = idx - 8
        b = RING[idx % 4]
        E(f"  ; ---- V tile {j}")
        for p in range(4):
            E(f"  v_lshlrev_b32 v{DD+2*p}, 16, v{SC+4*j+p}")
            E(f"  v_and_b32 v{DD+2*p+1}, 0xffff0000, v{SC+4*j+p}")
        for k in range(8):
            E(f"  v_fma_f32 v{DD+k}, v{DD+k}, s{SL2E}, -v13")
        for k in range(8):
            E(f"  v_exp_f32 v{DD+k}, v{DD+k}")
        E("  s_nop 0")
        for p in range(4):
            E(f"  v_cvt_pk_bf16_f32 v{24+p}, v{DD+2*p}, v{DD+2*p+1}")
        for p in range(4):
            E(f"  v_add_f32 v14, v14, v{DD+2*p}")
            E(f"  v_add_f32 v15, v15, v{DD+2*p+1}")
        n_tiles = min(3, 15 - idx)
        n_tw = max(0, min(2, idx - 12))
        E(f"  s_waitcnt vmcnt({(n_tiles + n_tw) * 8})")
        transpose(b, TT)
        E("  s_nop 1")
        for c in range(8):
            cc = "0" if j == 0 else f"v[{ACC+4*c}:{ACC+4*c+3}]"
            E(f"  v_mfma_f32_16x16x32_bf16 v[{ACC+4*c}:{ACC+4*c+3}], v[{TT+4*c}:{TT+4*c+3}], v[24:27], {cc}")
        if idx + 4 < 16:
            issue_tile(idx+4)
        elif idx in (12, 13):
            issue_tailw(idx - 12)
    stamp(7)
    E("  v_add_f32 v14, v14, v15")
    for x in (16, 32):
        bperm_xor(15, 14, 9, 8, x)
        E("  v_add_f32 v14, v14, v15")
    E("  v_lshlrev_b32 v9, 6, v3")
    E("  v_lshl_add_u32 v9, v4, 4, v9")
    E(f"  s_lshl_b32 s84, s{SW}, 11")
    E("  v_add_u32 v9, s84, v9")
    E("  v_lshlrev_b32 v10, 3, v3")
    E(f"  s_lshl_b32 s84, s{SW}, 5")
    E("  v_add_u32 v10, s84, v10")
    E("  v_mov_b32 v13, v14")
    E("  v_cmp_gt_u32 vcc, 4, v3")
    E(f"  s_and_saveexec_b64 s[{EX}:{EX+1}], vcc")
    for c in range(8):
        E(f"  ds_write_b128 v9, v[{ACC+4*c}:{ACC+4*c+3}] offset:{L_RED+c*256}")
    E(f"  ds_write_b64 v10, v[12:13] offset:{L_ML}")
    E(f"  s_mov_b64 exec, s[{EX}:{EX+1}]")
    E("  s_waitcnt lgkmcnt(0)")
    E("  s_barrier")
    E(f"  s_cmp_ge_u32 s{SW}, 2")
    E("  s_cbranch_scc1 L_comb_done")
    E("  v_lshrrev_b32 v10, 5, v0")
    E("  v_bfe_u32 v11, v0, 2, 3")
    E("  v_and_b32 v9, 3, v0")
    E("  v_lshlrev_b32 v9, 4, v9")
    E("  v_lshl_add_u32 v9, v10, 6, v9")
    E("  v_lshl_add_u32 v9, v11, 8, v9")
    for w in range(8):
        E(f"  ds_read_b128 v[{192+4*w}:{192+4*w+3}], v9 offset:{L_RED+w*2048}")
    E("  v_lshlrev_b32 v11, 3, v10")
    for w in range(8):
        E(f"  ds_read_b64 v[{32+2*w}:{33+2*w}], v11 offset:{L_ML+w*32}")
    E("  s_waitcnt lgkmcnt(0)")
    E("  v_max3_f32 v12, v32, v34, v36")
    E("  v_max3_f32 v12, v12, v38, v40")
    E("  v_max3_f32 v12, v12, v42, v44")
    E("  v_max_f32 v12, v12, v46")
    for w in range(8):
        E(f"  v_sub_f32 v{48+w}, v{32+2*w}, v12")
    for w in range(8):
        E(f"  v_mul_f32 v{48+w}, s{SL2E}, v{48+w}")
    for w in range(8):
        E(f"  v_exp_f32 v{48+w}, v{48+w}")
    E("  s_nop 0")
    for r in range(4):
        E(f"  v_mul_f32 v{16+r}, v48, v{192+r}")
    E("  v_mul_f32 v13, v48, v33")
    for w in range(1, 8):
        for r in range(4):
            E(f"  v_fmac_f32 v{16+r}, v{48+w}, v{192+4*w+r}")
        E(f"  v_fmac_f32 v13, v{48+w}, v{33+2*w}")
    E("  v_lshlrev_b32 v9, 4, v0")
    E("  s_lshl_b32 s84, s2, 11")
    E(f"  s_add_u32 s84, s84, 0x{OP:x}")
    E(f"  buffer_store_dwordx4 v[16:19], v9, s[{S_WS}:{S_WS+3}], s84 offen sc1")
    E("  v_and_b32 v9, 31, v0")
    E("  v_cmp_eq_u32 vcc, 0, v9")
    E("  s_lshl_b32 s84, s2, 5")
    E(f"  s_add_u32 s84, s84, 0x{ML:x}")
    E(f"  s_and_saveexec_b64 s[{EX}:{EX+1}], vcc")
    E(f"  buffer_store_dwordx2 v[12:13], v11, s[{S_WS}:{S_WS+3}], s84 offen sc1")
    E(f"  s_mov_b64 exec, s[{EX}:{EX+1}]")
    E("  s_waitcnt vmcnt(0)")
    E("L_comb_done:")
    E("  s_barrier")
    E(f"  s_cmp_lg_u32 s{SW}, 0")
    E("  s_cbranch_scc1 L_noflag")
    set_flag(FLA, 2)
    E("L_noflag:")
    stamp(8)
    E(f"  s_cmp_eq_u32 s{SROLE}, 0")
    E("  s_cbranch_scc1 L_end")
    E(f"  s_cmp_eq_u32 s{SROLE}, 3")
    E("  s_cbranch_scc1 L_final")
    E("  s_waitcnt vmcnt(0)")
    transpose(RING[0], 128)
    transpose(RING[1], 160)
    E(f"  s_cmp_lg_u32 s{SW}, 0")
    E("  s_cbranch_scc1 L_t_wait")
    E(f"  s_cmp_eq_u32 s{SROLE}, 2")
    E("  s_cbranch_scc1 L_t_pollf")
    E("  v_bfe_u32 v11, v1, 2, 3")
    E("  v_lshlrev_b32 v11, 5, v11")
    E("  v_and_b32 v12, 3, v1")
    E("  v_add_u32 v11, v11, v12")
    E(f"  s_lshr_b32 s89, s{SRID}, 2")
    E("  s_lshl_b32 s89, s89, 2")
    E("  v_add_u32 v11, s89, v11")
    E("  v_lshlrev_b32 v11, 7, v11")
    E(f"  v_add_u32 v11, 0x{FLA:x}, v11")
    E("  s_mov_b64 s[92:93], exec")
    poll_flags(11, 92)
    E("  s_branch L_t_wait")
    E("L_t_pollf:")
    E("  v_lshlrev_b32 v11, 7, v1")
    E(f"  v_add_u32 v11, 0x{FLG:x}, v11")
    E("  s_mov_b64 s[92:93], exec")
    for j in range(4):
        if j == 3:
            E("  s_mov_b32 s93, 0")
        poll_flags(11, 92)
        if j < 3:
            E(f"  v_add_u32 v11, {64*128}, v11")
    E("L_t_wait:")
    E("  s_barrier")
    stamp(9)
    E(f"  s_cmp_ge_u32 s{SW}, 4")
    E("  s_cbranch_scc1 L_t_bdone")
    E("  v_lshrrev_b32 v10, 5, v0")
    E("  v_and_b32 v11, 31, v0")
    E(f"  s_cmp_eq_u32 s{SROLE}, 2")
    E("  s_cbranch_scc1 L_t_down")
    E("  v_lshlrev_b32 v12, 16, v10")
    E("  v_lshl_add_u32 v12, v11, 4, v12")
    E(f"  s_lshr_b32 s84, s{SRID}, 2")
    E(f"  s_and_b32 s85, s{SRID}, 3")
    E("  s_lshl_b32 s86, s84, 13")
    E("  s_lshl_b32 s87, s85, 9")
    E("  s_add_u32 s86, s86, s87")
    E(f"  s_add_u32 s86, s86, 0x{OP:x}")
    for s in range(4):
        E(f"  buffer_load_dwordx4 v[{64+4*s}:{64+4*s+3}], v12, s[{S_WS}:{S_WS+3}], s86 offen offset:{s*2048} sc1") if s < 2 else None
    E("  s_add_u32 s86, s86, 4096")
    for s in range(2, 4):
        E(f"  buffer_load_dwordx4 v[{64+4*s}:{64+4*s+3}], v12, s[{S_WS}:{S_WS+3}], s86 offen offset:{(s-2)*2048} sc1")
    E("  v_lshlrev_b32 v12, 10, v10")
    E("  s_lshl_b32 s86, s84, 7")
    E("  s_lshl_b32 s87, s85, 3")
    E("  s_add_u32 s86, s86, s87")
    E(f"  s_add_u32 s86, s86, 0x{ML:x}")
    for s in range(4):
        E(f"  buffer_load_dwordx2 v[{32+2*s}:{33+2*s}], v12, s[{S_WS}:{S_WS+3}], s86 offen offset:{s*32} sc1")
    E("  s_waitcnt vmcnt(0)")
    E("  v_max3_f32 v12, v32, v34, v36")
    E("  v_max_f32 v12, v12, v38")
    for s in range(4):
        E(f"  v_sub_f32 v{40+s}, v{32+2*s}, v12")
    for s in range(4):
        E(f"  v_mul_f32 v{40+s}, s{SL2E}, v{40+s}")
    for s in range(4):
        E(f"  v_exp_f32 v{40+s}, v{40+s}")
    E("  s_nop 0")
    E("  v_mul_f32 v13, v40, v33")
    for s in range(1, 4):
        E(f"  v_fmac_f32 v13, v{40+s}, v{33+2*s}")
    for j in range(4):
        E(f"  v_mul_f32 v{44+j}, v40, v{64+j}")
    for s in range(1, 4):
        for j in range(4):
            E(f"  v_fmac_f32 v{44+j}, v{40+s}, v{64+4*s+j}")
    E("  v_rcp_f32 v12, v13")
    E("  s_nop 0")
    for j in range(4):
        E(f"  v_mul_f32 v{64+j}, v{44+j}, v12")
    for j in range(4):
        E(f"  v_fma_f32 v{80+j}, -v{64+j}, v13, v{44+j}")
    for j in range(4):
        E(f"  v_fma_f32 v{64+j}, v{80+j}, v12, v{64+j}")
    E("  v_cvt_pk_bf16_f32 v16, v64, v65")
    E("  v_cvt_pk_bf16_f32 v17, v66, v67")
    E("  s_branch L_t_bst")
    E("L_t_down:")
    E("  v_lshlrev_b32 v12, 9, v10")
    E("  v_lshl_add_u32 v12, v11, 4, v12")
    E(f"  s_lshl_b32 s84, s{SRID}, 12")
    E(f"  s_add_u32 s84, s84, 0x{FP:x}")
    E(f"  s_add_u32 s85, s84, {14*4096}")
    for kc in range(8):
        E(f"  buffer_load_dwordx4 v[{32+4*kc}:{32+4*kc+3}], v12, s[{S_WS}:{S_WS+3}], s84 offen sc1")
        E(f"  buffer_load_dwordx4 v[{64+4*kc}:{64+4*kc+3}], v12, s[{S_WS}:{S_WS+3}], s85 offen sc1")
        if kc < 7:
            E(f"  s_add_u32 s84, s84, {28*4096}")
            E(f"  s_add_u32 s85, s85, {28*4096}")
    E("  s_waitcnt vmcnt(0)")
    for b0 in (32, 64):
        for r in range(4):
            E(f"  v_add_f32 v{b0+r}, v{b0+r}, v{b0+4+r}")
            E(f"  v_add_f32 v{b0+8+r}, v{b0+8+r}, v{b0+12+r}")
            E(f"  v_add_f32 v{b0+16+r}, v{b0+16+r}, v{b0+20+r}")
            E(f"  v_add_f32 v{b0+24+r}, v{b0+24+r}, v{b0+28+r}")
        for r in range(4):
            E(f"  v_add_f32 v{b0+r}, v{b0+r}, v{b0+8+r}")
            E(f"  v_add_f32 v{b0+16+r}, v{b0+16+r}, v{b0+24+r}")
        for r in range(4):
            E(f"  v_add_f32 v{b0+r}, v{b0+r}, v{b0+16+r}")
    for j in range(4):
        E(f"  v_cvt_pk_bf16_f32 v{40+j}, v{32+j}, v{64+j}")
    for j in range(4):
        E(f"  v_lshlrev_b32 v{32+j}, 16, v{40+j}")
        E(f"  v_and_b32 v{64+j}, 0xffff0000, v{40+j}")
    for j in range(4):
        E(f"  v_max_f32 v{32+j}, 0, v{32+j}")
    for j in range(4):
        E(f"  v_mul_f32 v{32+j}, v{32+j}, v{64+j}")
    E("  v_cvt_pk_bf16_f32 v16, v32, v33")
    E("  v_cvt_pk_bf16_f32 v17, v34, v35")
    E("L_t_bst:")
    E("  v_lshlrev_b32 v12, 3, v0")
    E(f"  ds_write_b64 v12, v[16:17] offset:{L_O}")
    E("  s_waitcnt lgkmcnt(0)")
    E("L_t_bdone:")
    E("  s_barrier")
    E("  v_and_b32 v10, 7, v3")
    E("  v_lshlrev_b32 v10, 8, v10")
    E("  v_lshl_add_u32 v10, v4, 4, v10")
    E(f"  s_and_b32 s84, s{SW}, 1")
    E("  s_lshl_b32 s84, s84, 7")
    E("  v_add_u32 v10, s84, v10")
    E(f"  ds_read_b128 v[16:19], v10 offset:{L_O}")
    E(f"  ds_read_b128 v[20:23], v10 offset:{L_O+64}")
    E("  s_waitcnt lgkmcnt(0)")
    for ks in range(2):
        for c in range(8):
            cc = "0" if ks == 0 else f"v[{ACC+4*c}:{ACC+4*c+3}]"
            E(f"  v_mfma_f32_16x16x32_bf16 v[{ACC+4*c}:{ACC+4*c+3}], v[{128+32*ks+4*c}:{128+32*ks+4*c+3}], v[{16+4*ks}:{19+4*ks}], {cc}")
    E("  v_lshlrev_b32 v9, 6, v3")
    E("  v_lshl_add_u32 v9, v4, 4, v9")
    E(f"  s_lshl_b32 s84, s{SW}, 12")
    E("  v_add_u32 v9, s84, v9")
    E("  v_cmp_gt_u32 vcc, 8, v3")
    E(f"  s_and_saveexec_b64 s[{EX}:{EX+1}], vcc")
    E("  s_nop 7")
    for c in range(8):
        E(f"  ds_write_b128 v9, v[{ACC+4*c}:{ACC+4*c+3}] offset:{L_RED+c*512}")
    E(f"  s_mov_b64 exec, s[{EX}:{EX+1}]")
    E("  s_waitcnt lgkmcnt(0)")
    E("  s_barrier")
    E("  v_and_b32 v9, 255, v0")
    E("  v_lshlrev_b32 v9, 4, v9")
    E("  v_lshrrev_b32 v13, 8, v0")
    E("  v_lshl_add_u32 v9, v13, 14, v9")
    for k in range(4):
        E(f"  ds_read_b128 v[{64+4*k}:{64+4*k+3}], v9 offset:{L_RED+k*4096}")
    E("  v_bfe_u32 v10, v0, 5, 3")
    E("  v_bfe_u32 v11, v0, 2, 3")
    E("  v_and_b32 v12, 3, v0")
    E("  v_lshlrev_b32 v11, 11, v11")
    E("  v_lshl_add_u32 v11, v10, 6, v11")
    E("  v_lshl_add_u32 v11, v12, 4, v11")
    E("  v_lshl_add_u32 v11, v13, 10, v11")
    E(f"  s_mov_b32 s84, s{SRID}")
    E(f"  s_cmp_eq_u32 s{SROLE}, 2")
    E("  s_cselect_b32 s85, 32, 0")
    E("  s_add_u32 s84, s84, s85")
    E("  s_lshl_b32 s84, s84, 14")
    E(f"  s_add_u32 s84, s84, 0x{P3:x}")
    E("  s_waitcnt lgkmcnt(0)")
    for r in range(4):
        E(f"  v_add_f32 v{64+r}, v{64+r}, v{68+r}")
        E(f"  v_add_f32 v{72+r}, v{72+r}, v{76+r}")
    E(f"  buffer_store_dwordx4 v[64:67], v11, s[{S_WS}:{S_WS+3}], s84 offen sc1")
    E(f"  buffer_store_dwordx4 v[72:75], v11, s[{S_WS}:{S_WS+3}], s84 offen offset:512 sc1")
    E("  s_waitcnt vmcnt(0)")
    E("  s_barrier")
    E(f"  s_cmp_lg_u32 s{SW}, 0")
    E("  s_cbranch_scc1 L_end")
    E(f"  s_mov_b32 s90, s{SRID}")
    E(f"  s_cmp_eq_u32 s{SROLE}, 2")
    E("  s_cselect_b32 s85, 32, 0")
    E("  s_add_u32 s90, s90, s85")
    set_flag(FLS, 90)
    stamp(10)
    E("  s_branch L_end")
    E("L_final:")
    E(f"  s_cmp_lg_u32 s{SW}, 0")
    E("  s_cbranch_scc1 L_f_wait")
    E("  v_lshlrev_b32 v11, 7, v1")
    E(f"  v_add_u32 v11, 0x{FLS:x}, v11")
    E("  s_mov_b32 s92, 0xffffffff")
    E("  s_mov_b32 s93, 0x00003fff")
    poll_flags(11, 92)
    E("L_f_wait:")
    E("  s_barrier")
    stamp(10)
    E("  v_lshrrev_b32 v10, 5, v0")
    E("  v_and_b32 v11, 31, v0")
    E("  v_lshlrev_b32 v12, 14, v10")
    E("  v_lshl_add_u32 v12, v11, 4, v12")
    E(f"  s_lshl_b32 s84, s{SRID}, 9")
    E(f"  s_add_u32 s84, s84, 0x{P3:x}")
    E(f"  buffer_load_dwordx4 v[64:67], v12, s[{S_WS}:{S_WS+3}], s84 offen sc1")
    E(f"  s_add_u32 s85, s84, {16*16384}")
    E(f"  buffer_load_dwordx4 v[68:71], v12, s[{S_WS}:{S_WS+3}], s85 offen sc1")
    E(f"  s_add_u32 s85, s84, {32*16384}")
    for r in range(4):
        E(f"  v_mov_b32 v{72+r}, 0")
    E("  v_cmp_gt_u32 vcc, 14, v10")
    E(f"  s_and_saveexec_b64 s[{EX}:{EX+1}], vcc")
    E(f"  buffer_load_dwordx4 v[72:75], v12, s[{S_WS}:{S_WS+3}], s85 offen sc1")
    E(f"  s_mov_b64 exec, s[{EX}:{EX+1}]")
    E("  v_lshrrev_b32 v13, 2, v11")
    E("  v_and_b32 v14, 3, v11")
    E("  v_lshl_add_u32 v13, v14, 5, v13")
    E("  v_lshlrev_b32 v13, 1, v13")
    E(f"  s_lshl_b32 s86, s{SRID}, 8")
    for r in range(4):
        E(f"  buffer_load_ushort v{16+r}, v13, s[{S_X}:{S_X+3}], s86 offen offset:{r*16}")
    E("  s_waitcnt vmcnt(0)")
    for r in range(4):
        E(f"  v_add_f32 v{64+r}, v{64+r}, v{68+r}")
    E("  v_lshlrev_b32 v9, 4, v0")
    E(f"  ds_write_b128 v9, v[64:67] offset:{L_RED}")
    E(f"  ds_write_b128 v9, v[72:75] offset:{L_RED+8192}")
    E("  s_waitcnt lgkmcnt(0)")
    E("  s_barrier")
    E(f"  s_cmp_lg_u32 s{SW}, 0")
    E("  s_cbranch_scc1 L_end")
    E("  v_lshrrev_b32 v9, 5, v1")
    E("  v_lshlrev_b32 v9, 13, v9")
    E("  v_lshl_add_u32 v9, v11, 4, v9")
    for k in range(16):
        E(f"  ds_read_b128 v[{64+4*k}:{64+4*k+3}], v9 offset:{L_RED+k*512}")
    E("  s_waitcnt lgkmcnt(0)")
    for st in (1, 2, 4, 8):
        for k in range(0, 16, 2*st):
            for r in range(4):
                E(f"  v_add_f32 v{64+4*k+r}, v{64+4*k+r}, v{64+4*(k+st)+r}")
    E("  v_lshlrev_b32 v8, 2, v1")
    E("  v_xor_b32 v8, 128, v8")
    for r in range(4):
        E(f"  ds_bpermute_b32 v{96+r}, v8, v{64+r}")
    E("  s_waitcnt lgkmcnt(0)")
    for r in range(4):
        E(f"  v_cvt_pk_bf16_f32 v{20+r}, v{64+r}, v{96+r}")
    for r in range(4):
        E(f"  v_lshlrev_b32 v{64+r}, 16, v{20+r}")
        E(f"  v_and_b32 v{96+r}, 0xffff0000, v{20+r}")
    for r in range(4):
        E(f"  v_mul_f32 v{24+r}, 0x{LOG2E ^ 0x80000000:x}, v{96+r}")
    for r in range(4):
        E(f"  v_exp_f32 v{24+r}, v{24+r}")
    E("  s_nop 0")
    for r in range(4):
        E(f"  v_add_f32 v{24+r}, 1.0, v{24+r}")
    for r in range(4):
        E(f"  v_rcp_f32 v{24+r}, v{24+r}")
    E("  s_nop 0")
    for r in range(4):
        E(f"  v_mul_f32 v{24+r}, v{96+r}, v{24+r}")
    for r in range(4):
        E(f"  v_cvt_pk_bf16_f32 v{24+r}, v{24+r}, v{24+r}")
    for r in range(4):
        E(f"  v_lshlrev_b32 v{24+r}, 16, v{24+r}")
    for r in range(4):
        E(f"  v_mul_f32 v{24+r}, v{64+r}, v{24+r}")
    for r in range(4):
        E(f"  v_cvt_pk_bf16_f32 v{24+r}, v{24+r}, v{24+r}")
    for r in range(4):
        E(f"  v_lshlrev_b32 v{24+r}, 16, v{24+r}")
        E(f"  v_lshlrev_b32 v{16+r}, 16, v{16+r}")
    for r in range(4):
        E(f"  v_add_f32 v{24+r}, v{16+r}, v{24+r}")
    for r in range(4):
        E(f"  v_cvt_pk_bf16_f32 v{24+r}, v{24+r}, v{24+r}")
    E("  s_mov_b32 s92, 0xffffffff")
    E("  s_mov_b32 s93, 0")
    E("  s_mov_b64 exec, s[92:93]")
    for r in range(4):
        E(f"  buffer_store_short v{24+r}, v13, s[{S_OUT}:{S_OUT+3}], s86 offen offset:{r*16}")
    E("  s_mov_b64 exec, -1")
    stamp(11)
    E("L_end:")
    stamp(12)
    stamp_dump()
    E("L_end2:")
    E("  s_endpgm")

for line in """One fused launch, 256 workgroups x 8 waves (one workgroup per CU), written by a generator script.
  wave 0 (helper): LayerNorm + a 64x128 tile of wq and of W_gate/W_up (MFMA), publishes partial sums to d_ws,
                   gathers the q of its (batch, kv head); the other waves already stream K tiles meanwhile.
  all waves      : 256 keys each: K phase (scores, bf16 rounding like the reference, true row max),
                   V phase (exp, P.V by MFMA after an in-register 8x8 transpose), workgroup combine in LDS.
  tail           : 32 workgroups combine the 4 key splits of one head and apply wo, 14 apply W_down,
                   32 sum those partials and apply silu gate + residual.
  hand-offs      : sc1 stores, drained, then a flag word (one per 128-B line of d_ws) holding a launch-unique
                   nonce that workgroup 0 publishes through d_debug[0]; consumers poll with sc1 loads.""".splitlines():
    E("; " + line)
E(f"; @launch grid=(256,1,1) block=(512,1,1) lds={L_SIZE}")
E('.amdgcn_target "amdgcn-amd-amdhsa--gfx950"')
E(".text")
gen()
E('.section .rodata,"a"')
E(".p2align 6")
E(f".amdhsa_kernel {NAME}_kernel")
E("  .amdhsa_next_free_vgpr 256")
E("  .amdhsa_next_free_sgpr 102")
E("  .amdhsa_accum_offset 256")
E("  .amdhsa_group_segment_fixed_size 0")
E("  .amdhsa_kernarg_size 96")
E("  .amdhsa_user_sgpr_count 2")
E("  .amdhsa_user_sgpr_kernarg_segment_ptr 1")
E("  .amdhsa_system_sgpr_workgroup_id_x 1")
E("  .amdhsa_float_denorm_mode_32 3")
E(".end_amdhsa_kernel")
out = [o for o in out if o is not None]
open(sys.argv[1] if len(sys.argv) > 1 else f"cdna_kernels/{NAME}.s", "w").write("\n".join(out) + "\n")
```
